```python
import torch

def _softmax(x, axis=-1):
    return torch.softmax(x, dim=axis)
def _gelu(x):
    return torch.nn.functional.gelu(x, approximate="tanh")
def _silu(x):
    return torch.nn.functional.silu(x)
def _sigmoid(x):
    return torch.sigmoid(x)
def _layernorm(x, axis=-1, eps=1e-5):
    m = x.mean(dim=axis, keepdim=True)
    v = x.var(dim=axis, keepdim=True, unbiased=False)
    return (x - m) / torch.sqrt(v + eps)
def _scatter_add(tgt, idx, src, axis=0):
    return tgt.clone().index_add_(axis, idx, src)
def _segment_sum(src, seg, n):
    out = torch.zeros((n,) + src.shape[1:], dtype=src.dtype)
    return out.index_add_(0, seg, src)
def _pad(x, pw):
    flat = tuple(v for pair in reversed(pw) for v in pair)
    return torch.nn.functional.pad(x, flat)

kernel_name = 'sequential_preLN__sliding_block_cached__mixer_token_mlp__decode'

def setup_inputs():

    _w = (lambda a: (lambda t: t.to(torch.bfloat16) if t.is_floating_point() else t)(torch.as_tensor(a)))
    def _A_setup():
        B, Sq, D = 1, 1, 448
        Hq, Hkv, Sk, Dh = 16, 8, 65536, 256
        assert Hq % Hkv == 0, (Hq, Hkv)
        return {
            "x": _w((lambda *s: torch.randn(*s, dtype=torch.bfloat16) * 0.05)(B, Sq, D)),
            "k_cache": _w((lambda *s: torch.randn(*s, dtype=torch.bfloat16) * 3.2)(B, Hkv, Sk, Dh)),
            "v_cache": _w((lambda *s: torch.randn(*s, dtype=torch.bfloat16) * 0.8)(B, Hkv, Sk, Dh)),
            "wq": _w((lambda *s: torch.randn(*s, dtype=torch.bfloat16) * 3.2)(D, Hq * Dh) * (D ** -0.5)),
            "wo": _w((lambda *s: torch.randn(*s, dtype=torch.bfloat16) * 0.8)(Hq * Dh, D) * ((Hq * Dh) ** -0.5)),
        }
    _A_in = _A_setup()

    def _B_setup():
        B, S, D, F = 1, 1, 448, 1792
        return {
            "x": _w((lambda *s: torch.randn(*s, dtype=torch.bfloat16) * 0.05)(B, S, D)),
            "w1": _w((lambda *s: torch.randn(*s, dtype=torch.bfloat16) * 3.2)(S, F) * (S ** -0.5)),
            "b1": _w((lambda *s: torch.randn(*s, dtype=torch.bfloat16) * 3.2)(F) * 0.02),
            "w2": _w((lambda *s: torch.randn(*s, dtype=torch.bfloat16) * 0.4)(F, S) * (F ** -0.5)),
            "b2": _w((lambda *s: torch.randn(*s, dtype=torch.bfloat16) * 0.4)(S) * 0.02),
        }
    _B_in = _B_setup()

    return {
        "A_x": _A_in["x"],
        "A_k_cache": _A_in["k_cache"],
        "A_v_cache": _A_in["v_cache"],
        "A_wq": _A_in["wq"],
        "A_wo": _A_in["wo"],
        "B_x": _B_in["x"],
        "B_w1": _B_in["w1"],
        "B_b1": _B_in["b1"],
        "B_w2": _B_in["w2"],
        "B_b2": _B_in["b2"],
    }

def reference(A_x, A_k_cache, A_v_cache, A_wq, A_wo, B_x, B_w1, B_b1, B_w2, B_b2):
    def _A_ref(x, k_cache, v_cache, wq, wo):
        B, Sq, D = x.shape
        Hq, Dh = 16, 256
        Hkv, Sk = k_cache.shape[1], k_cache.shape[2]
        W = min(4096, max(256, Sk // 4))
        rep = Hq // Hkv
        q = (lambda x, *d: x.permute(*d))((x @ wq).reshape(B, Sq, Hq, Dh), 0, 2, 1, 3)
        k = (lambda x, n, axis: torch.repeat_interleave(x, n, dim=axis))(k_cache[:, :, Sk - W:, :], rep, axis=1)
        v = (lambda x, n, axis: torch.repeat_interleave(x, n, dim=axis))(v_cache[:, :, Sk - W:, :], rep, axis=1)
        scores = torch.einsum("bhqd,bhkd->bhqk", q, k) * (Dh ** -0.5)
        p = _softmax(scores, axis=-1)
        o = torch.einsum("bhqk,bhkd->bhqd", p, v)
        return (lambda x, *d: x.permute(*d))(o, 0, 2, 1, 3).reshape(B, Sq, Hq * Dh) @ wo

    def _B_ref(x, w1, b1, w2, b2):
        B, S, D = x.shape
        h = _layernorm(x, axis=-1)
        u = torch.einsum("bsd,sf->bdf", h, w1) + b1
        u = _gelu(u)
        y = torch.einsum("bdf,fs->bds", u, w2) + b2
        return (lambda x, *d: x.permute(*d))(y, 0, 2, 1)

    x = A_x
    h = x + _A_ref(_layernorm(x, axis=-1), A_k_cache, A_v_cache, A_wq, A_wo)
    h2 = h + _B_ref(_layernorm(h, axis=-1), B_w1, B_b1, B_w2, B_b2)
    return h2
```

```python
import re

TRANS = ("v_exp_f32", "v_log_f32", "v_rcp_f32", "v_rsq_f32", "v_sqrt_f32", "v_sin_f32", "v_cos_f32", "v_rcp_iflag_f32")

def regs_of(tok):
    tok = tok.strip()
    tok = tok.lstrip('-')
    m = re.fullmatch(r"abs\((.*)\)", tok) or re.fullmatch(r"\|(.*)\|", tok)
    if m: tok = m.group(1)
    m = re.fullmatch(r"([vsa])(\d+)", tok)
    if m: return {(m.group(1), int(m.group(2)))}
    m = re.fullmatch(r"([vsa])\[(\d+):(\d+)\]", tok)
    if m: return {(m.group(1), i) for i in range(int(m.group(2)), int(m.group(3)) + 1)}
    if tok in ("vcc", "vcc_lo", "vcc_hi"): return {("vcc", 0)}
    if tok in ("exec", "exec_lo", "exec_hi"): return {("exec", 0)}
    if tok == "m0": return {("m0", 0)}
    return set()

class Ins:
    def __init__(self, text):
        self.text = text
        body = text.split(";")[0].strip()
        parts = body.split(None, 1)
        self.op = parts[0]
        rest = parts[1] if len(parts) > 1 else ""
        ops, depth, cur = [], 0, ""
        for ch in rest:
            if ch in "[(": depth += 1
            if ch in "])": depth -= 1
            if ch == "," and depth == 0:
                ops.append(cur.strip()); cur = ""
            else: cur += ch
        if cur.strip(): ops.append(cur.strip())
        self.mods = ""
        if ops:
            sp = ops[-1].split(None, 1)
            ops[-1] = sp[0]
            if len(sp) > 1: self.mods = sp[1]
        self.ops = ops
        op = self.op
        base = re.sub(r"_(e32|e64|dpp|sdwa)$", "", op)
        self.base = base
        self.is_mfma = op.startswith("v_mfma")
        self.is_valu = op.startswith("v_") and not self.is_mfma
        self.is_dpp = op.endswith("_dpp") or bool(re.search(r"quad_perm|row_|wave_|bank_mask", self.mods))
        self.is_trans = base in TRANS
        self.is_perml = op.startswith("v_permlane")
        self.is_ds = op.startswith("ds_")
        self.is_vmem = op.startswith(("global_", "buffer_", "flat_"))
        self.is_salu = op.startswith("s_")
        self.is_branch = op.startswith(("s_branch", "s_cbranch"))
        self.ends = op in ("s_endpgm", "s_branch")
        R = [regs_of(o) for o in ops]
        d, u = set(), set()
        self.srcA = self.srcB = self.srcC = set()
        self.store_data = set()
        if self.is_mfma:
            d = R[0]; self.srcA, self.srcB, self.srcC = R[1], R[2], R[3]; u = R[1] | R[2] | R[3]
        elif self.is_perml:
            d = R[0] | R[1]; u = R[0] | R[1]
        elif self.is_valu:
            if base.startswith("v_cmpx"):
                d = R[0] | {("exec", 0)}; u = set().union(*R[1:])
            elif base.startswith("v_cmp"):
                d = R[0]; u = set().union(*R[1:])
            elif base in ("v_add_co_u32", "v_sub_co_u32", "v_addc_co_u32", "v_subb_co_u32", "v_div_scale_f32", "v_mad_u64_u32"):
                d = R[0] | R[1]; u = set().union(*R[2:])
            else:
                d = R[0]; u = set().union(*R[1:]) if len(R) > 1 else set()
                if base in ("v_fmac_f32", "v_dot2c_f32_bf16", "v_writelane_b32", "v_pk_fmac_f16") or self.is_dpp:
                    u |= R[0]
                if base == "v_cndmask_b32" and len(ops) == 3: u |= {("vcc", 0)}
        elif self.is_ds:
            if op.startswith(("ds_read", "ds_bpermute", "ds_permute", "ds_swizzle")):
                d = R[0]; u = set().union(*R[1:])
            else:
                u = set().union(*R)
        elif self.is_vmem:
            if "load" in op and not "lds" in op and not re.search(r"\blds\b", self.mods):
                d = R[0]; u = set().union(*R[1:])
            elif "load" in op:
                u = set().union(*R)
            elif "atomic" in op:
                u = set().union(*R)
            elif op.startswith("global_store"):
                u = set().union(*R); self.store_data = R[1] if re.search(r"x[34]$", op) else set()
            elif op.startswith("buffer_store"):
                u = set().union(*R); self.store_data = R[0] if re.search(r"x[34]$", op) else set()
            else:
                u = set().union(*R) if R else set()
        elif self.is_salu:
            if op.startswith(("s_cmp", "s_bitcmp")) or self.is_branch or op in ("s_waitcnt", "s_nop", "s_barrier", "s_sleep", "s_setprio", "s_endpgm"):
                u = set().union(*R) if R else set()
            else:
                d = R[0] if R else set(); u = set().union(*R[1:]) if len(R) > 1 else set()
                if "saveexec" in op: d |= {("exec", 0)}
        self.defs, self.uses = d, u
        self.passes = 0
        if self.is_mfma:
            self.passes = 4 if "16x16x32" in op or "16x16x16" in op else 8
    def states(self):
        if self.op == "s_nop": return int(self.ops[0], 0) + 1
        return 1

def need(p, c):
    n = 0
    vd = {r for r in p.defs if r[0] in "va"}
    sd = {r for r in p.defs if r[0] in ("s", "vcc")}
    if p.is_valu:
        if vd & c.uses:
            if c.is_valu and c.is_dpp: n = max(n, 2)
            if c.is_perml: n = max(n, 2)
            if c.is_mfma: n = max(n, 2)
            if c.base in ("v_readlane_b32", "v_readfirstlane_b32"): n = max(n, 1)
            if p.is_trans and c.is_valu and not c.is_trans: n = max(n, 1)
            if p.is_trans and not c.is_valu: n = max(n, 1)
            if "sdwa" in p.op or "op_sel" in p.mods and not p.op.startswith("v_pk"): n = max(n, 1)
        if sd & c.uses:
            if c.is_valu: n = max(n, 4 if c.base in ("v_readlane_b32", "v_writelane_b32") else 2)
            if c.is_vmem: n = max(n, 5)
            if c.is_salu: n = max(n, 1)
        if ("exec", 0) in p.defs:
            if c.is_dpp: n = max(n, 5)
            if c.is_mfma or c.is_perml or c.base in ("v_readlane_b32", "v_readfirstlane_b32", "v_writelane_b32"): n = max(n, 4)
    if p.is_mfma:
        big = {4: 8, 8: 12}[p.passes]; ovl = {4: 6, 8: 10}[p.passes]; war = {4: 3, 8: 7}[p.passes]
        if c.is_mfma:
            if p.defs & (c.srcA | c.srcB): n = max(n, big)
            if p.defs & c.srcC and not (p.defs == c.srcC and p.passes == c.passes): n = max(n, ovl)
            if p.defs & c.defs and not (p.defs == c.defs == c.srcC): n = max(n, ovl)
        else:
            if p.defs & (c.uses | c.defs): n = max(n, big)
            if c.is_valu and p.srcC & c.defs: n = max(n, war)
    if p.store_data and (p.store_data & c.defs): n = max(n, 2)
    if p.op.startswith("s_") and ("m0", 0) in p.defs and (c.is_vmem or c.is_ds): n = max(n, 1)
    return n

class Asm:
    def __init__(self):
        self.items = []
    def __call__(self, text):
        for ln in text.strip().split("\n"):
            ln = ln.strip()
            if not ln or ln.startswith(";"):
                self.items.append(('r', "    " + ln if ln else "")); continue
            if re.fullmatch(r"[\w.]+:", ln.split(";")[0].strip()):
                self.items.append(('l', ln.split(":")[0])); continue
            if ln.startswith("."):
                self.items.append(('r', ln)); continue
            self.items.append(('i', Ins(ln)))
    def fix(self, maxd=14):
        changed = True
        total = 0
        while changed:
            changed = False
            idx = [k for k, it in enumerate(self.items) if it[0] == 'i']
            labels = {it[1]: k for k, it in enumerate(self.items) if it[0] == 'l'}
            brs = {}
            for k in idx:
                ins = self.items[k][1]
                if ins.is_branch: brs.setdefault(ins.ops[0], []).append(k)
            def preds(k):
                out = []
                j = k - 1
                while j >= 0:
                    it = self.items[j]
                    if it[0] == 'l':
                        out += brs.get(it[1], [])
                    elif it[0] == 'i':
                        if not it[1].ends: out.append(j)
                        break
                    j -= 1
                return out
            for k in idx:
                c = self.items[k][1]
                if c.op == "s_nop": continue
                worst = 0
                stack = [(p, 0) for p in preds(k)]
                seen = {}
                while stack:
                    p, dist = stack.pop()
                    if dist >= maxd or seen.get(p, 99) <= dist: continue
                    seen[p] = dist
                    pi = self.items[p][1]
                    w = need(pi, c) - dist
                    worst = max(worst, w)
                    for q in preds(p): stack.append((q, dist + pi.states()))
                if worst > 0:
                    self.items.insert(k, ('i', Ins(f"s_nop {worst-1}")))
                    total += worst
                    changed = True
                    break
        return total
    def text(self):
        out = []
        for kind, v in self.items:
            if kind == 'i': out.append("    " + v.text)
            elif kind == 'l': out.append(v + ":")
            else: out.append(v)
        return "\n".join(out) + "\n"
```

```python
import sys
from asmx import Asm
NAME = "sequential_preLN__sliding_block_cached__mixer_token_mlp__decode"
KNAME = NAME + "_kernel"

WS_E  = 0x0
WS_A  = 0x1000
WS_ML = 0x10000
WS_O  = 0x20000
WS_P  = 0xA0000
WS_R  = 0x120000
TS_OFF = 256 << 20
L_QP, L_Q, L_SC, L_FL, L_OS, L_HS, L_YS, L_OP = 0, 4096, 5120, 6144, 6400, 6656, 8448, 10240
LDS_BYTES = 24576
SPIN = 1 << 18
import struct
def f2u(x): return struct.unpack("<I", struct.pack("<f", x))[0]
LOG2E = 1.4426950408889634
C_SC = f2u(0.0625 * LOG2E)
GK0 = -2.0 * 0.7978845608028654 * LOG2E
GK1 = GK0 * 0.044715

HEADER = open("cdna_kernels/" + NAME + ".s.ref").read().split("; Override launch")[0] if False else ""

def gen(diag=False, opt=None):
    opt = opt or {}
    a = Asm()
    nst = [0]
    def stamp(i):
        if diag: a(f"s_memtime s[{64+2*i}:{65+2*i}]")
    def endp():
        a("s_branch L_dump" if diag else "s_endpgm")
    DPP = "row_mask:0xf bank_mask:0xf"
    def red_row(op, r):
        for m in ("quad_perm:[1,0,3,2]", "quad_perm:[2,3,0,1]", "row_half_mirror", "row_mirror"):
            a(f"{op}_dpp {r}, {r}, {r} {m} {DPP}")
    def red_x16(op, r, t):
        a(f"v_mov_b32 {t}, {r}\nv_permlane16_swap_b32 {t}, {r}\n{op} {r}, {r}, {t}")
    def red_x32(op, r, t):
        a(f"v_mov_b32 {t}, {r}\nv_permlane32_swap_b32 {t}, {r}\n{op} {r}, {r}, {t}")
    def allred(op, r, t):
        red_row(op, r); red_x16(op, r, t); red_x32(op, r, t)
    def rbf(dst, src):
        a(f"v_cvt_pk_bf16_f32 {dst}, {src}, {src}\nv_lshlrev_b32 {dst}, 16, {dst}")
    def masks(m0, t0, t1):
        a(f"""v_and_b32 {t0}, 1, v0
v_lshlrev_b32 {t0}, 4, {t0}
v_mov_b32 {t1}, 0xffff
v_lshlrev_b32 {t0}, {t0}, {t1}
v_bfe_u32 {t1}, v0, 1, 2""")
        for d in range(4): a(f"v_cmp_eq_u32 s[{44+2*d}:{45+2*d}], {d}, {t1}")
        for d in range(4): a(f"v_cndmask_b32 v{m0+d}, 0, {t0}, s[{44+2*d}:{45+2*d}]")
    def lstore(tag, ins):
        a(f"s_cmp_eq_u32 s9, 1\ns_cbranch_scc1 L_{tag}_f")
        for i in ins: a(i + " sc1")
        a(f"s_branch L_{tag}_d\nL_{tag}_f:")
        for i in ins: a(i)
        a(f"L_{tag}_d:")
    def sentinel_check(regs, t, retry):
        regs = list(regs)
        a(f"v_max3_u32 {t}, v{regs[0]}, v{regs[1]}, v{regs[2]}") if len(regs) >= 3 else a(f"v_max_u32 {t}, v{regs[0]}, v{regs[1]}")
        rest = regs[3:] if len(regs) >= 3 else []
        while len(rest) >= 2:
            a(f"v_max3_u32 {t}, {t}, v{rest[0]}, v{rest[1]}"); rest = rest[2:]
        if rest: a(f"v_max_u32 {t}, {t}, v{rest[0]}")
        a(f"v_cmp_eq_u32 vcc, -1, {t}\ns_cbranch_vccnz {retry}")
    def spin_top(lbl, done):
        a(f"s_mov_b32 s10, {SPIN}\n{lbl}:\ns_sub_u32 s10, s10, 1\ns_cbranch_scc1 {done}")
    def tred4(r0, t):
        a(f"""v_permlane32_swap_b32 v{r0}, v{r0+2}
v_permlane32_swap_b32 v{r0+1}, v{r0+3}
v_add_f32 v{r0}, v{r0}, v{r0+2}
v_add_f32 v{r0+1}, v{r0+1}, v{r0+3}
v_permlane16_swap_b32 v{r0}, v{r0+1}
v_add_f32 v{r0}, v{r0}, v{r0+1}
v_add_f32_dpp v{r0}, v{r0}, v{r0} row_ror:8 {DPP}""")

    if diag:
        a("s_memrealtime s[60:61]\ns_memtime s[62:63]")
        for i in range(64, 96): a(f"s_mov_b32 s{i}, 0")
    a(f"""s_cmp_ge_u32 s2, 256
s_cbranch_scc1 L_exit
s_load_dwordx16 s[16:31], s[0:1], 0
s_load_dwordx8 s[32:39], s[0:1], 64
s_load_dwordx2 s[40:41], s[0:1], 96
v_lshrrev_b32 v1, 6, v0
v_and_b32 v0, 63, v0
s_and_b32 s3, s2, 7
v_readfirstlane_b32 s5, v1
s_lshr_b32 s4, s2, 3
s_lshl_b32 s6, s3, 5
s_add_u32 s6, s6, s4
s_and_b32 s8, s4, 15
s_cmp_ge_u32 s5, 8
s_cbranch_scc1 L_S
s_cmp_eq_u32 s5, 7
s_cbranch_scc1 L_H
s_cmp_ge_u32 s4, 16
s_cbranch_scc1 L_W2""")

    a(f"""L_WQ:
s_setprio 2
v_lshrrev_b32 v1, 4, v0
v_lshlrev_b32 v1, 1, v1
v_bfe_u32 v2, v0, 2, 1
v_add_u32 v1, v1, v2
v_lshlrev_b32 v1, 3, v1
v_bfe_u32 v2, v0, 3, 1
v_add_u32 v1, v1, v2
s_lshl_b32 s11, s5, 6
v_add_u32 v1, s11, v1
v_lshlrev_b32 v1, 13, v1
v_and_b32 v2, 3, v0
v_lshl_add_u32 v1, v2, 4, v1
s_lshl_b32 s11, s3, 10
s_lshl_b32 s12, s8, 6
s_add_u32 s11, s11, s12
v_add_u32 v1, s11, v1
v_lshrrev_b32 v2, 3, v0
v_lshlrev_b32 v2, 4, v2
s_lshl_b32 s11, s5, 7
v_add_u32 v2, s11, v2
v_lshlrev_b32 v3, 4, v0
v_mov_b32 v12, 0
v_mov_b32 v13, 0
v_mov_b32 v14, 0
v_mov_b32 v15, 0
v_add_u32 v4, 0x4000, v1
v_add_u32 v5, 0x8000, v1
v_add_u32 v6, 0xc000, v1
s_mov_b32 s12, -1
s_mov_b32 s13, 0x00ffffff
s_waitcnt lgkmcnt(0)
s_mov_b64 exec, s[12:13]
global_load_dwordx4 v[12:15], v3, s[16:17]
s_mov_b64 exec, -1
global_load_dwordx4 v[16:19], v2, s[16:17]
global_load_dwordx4 v[32:35], v1, s[22:23] nt
global_load_dwordx4 v[36:39], v4, s[22:23] nt
global_load_dwordx4 v[40:43], v5, s[22:23] nt
global_load_dwordx4 v[44:47], v6, s[22:23] nt""")
    stamp(0)
    masks(8, "v4", "v5")
    a(f"""v_bfe_u32 v4, v0, 3, 1
v_lshrrev_b32 v5, 5, v0
v_lshl_add_u32 v4, v4, 1, v5
s_lshl_b32 s11, s5, 2
v_add_u32 v4, s11, v4
v_lshlrev_b32 v7, 7, v4
v_and_b32 v4, 3, v0
v_lshl_add_u32 v7, v4, 5, v7
v_bfe_u32 v4, v0, 4, 1
v_lshl_add_u32 v7, v4, 4, v7
s_mov_b32 s14, 0x01000100
s_mov_b32 s15, 0x03020302
s_mov_b32 s42, 0xffff0000
s_mov_b32 s43, {f2u(1.0/448)}
s_waitcnt vmcnt(5)""")
    stamp(1)
    for i in range(4):
        a(f"v_lshlrev_b32 v{20+2*i}, 16, v{12+i}\nv_and_b32 v{21+2*i}, s42, v{12+i}")
    a("v_add_f32 v4, v20, v21\nv_add_f32 v5, v22, v23\nv_add_f32 v6, v24, v25\nv_add_f32 v28, v26, v27\nv_add_f32 v4, v4, v5\nv_add_f32 v6, v6, v28\nv_add_f32 v4, v4, v6")
    allred("v_add_f32", "v4", "v5")
    a("v_mul_f32 v4, s43, v4          ; mean\nv_mov_b32 v6, 0\ns_mov_b64 exec, s[12:13]")
    for i in range(8): a(f"v_sub_f32 v{20+i}, v{20+i}, v4")
    for i in range(8): a(f"v_fmac_f32 v6, v{20+i}, v{20+i}")
    a("s_mov_b64 exec, -1")
    allred("v_add_f32", "v6", "v5")
    a("v_mul_f32 v6, s43, v6          ; var")
    rbf("v4", "v4"); rbf("v6", "v6")
    a(f"v_add_f32 v6, {f2u(1e-5)}, v6"); rbf("v6", "v6")
    a("v_sqrt_f32 v6, v6"); rbf("v6", "v6")
    a("v_rcp_f32 v6, v6\ns_waitcnt vmcnt(4)")
    for i in range(4):
        a(f"v_lshlrev_b32 v{20+2*i}, 16, v{16+i}\nv_and_b32 v{21+2*i}, s42, v{16+i}")
    for i in range(8): a(f"v_sub_f32 v{20+i}, v{20+i}, v4")
    for i in range(4): a(f"v_cvt_pk_bf16_f32 v{16+i}, v{20+2*i}, v{21+2*i}")
    for i in range(4):
        a(f"v_lshlrev_b32 v{20+2*i}, 16, v{16+i}\nv_and_b32 v{21+2*i}, s42, v{16+i}")
    for i in range(8): a(f"v_mul_f32 v{20+i}, v{20+i}, v6")
    for i in range(4): a(f"v_cvt_pk_bf16_f32 v{16+i}, v{20+2*i}, v{21+2*i}")
    for t in range(4):
        for e in range(2):
            a(f"v_perm_b32 v4, v{16+t}, v{16+t}, s{14+e}")
            for d in range(4): a(f"v_and_b32 v{48+(t*2+e)*4+d}, v4, v{8+d}")
    for t in range(4):
        a(f"s_waitcnt vmcnt({3-t})")
        if t == 3: stamp(2)
        for e in range(2):
            c = "0" if t == 0 else f"v[{20+4*e}:{23+4*e}]"
            a(f"v_mfma_f32_16x16x32_bf16 v[{20+4*e}:{23+4*e}], v[{48+(t*2+e)*4}:{51+(t*2+e)*4}], v[{32+4*t}:{35+4*t}], {c}")
    a("s_mov_b32 s44, 0xff00ff00\ns_mov_b32 s45, 0xff00ff00\ns_mov_b32 s46, 0x0f0f0f0f\ns_mov_b32 s47, 0xf0f0f0f0")
    for r in range(4): a(f"v_cndmask_b32 v{20+r}, v{20+r}, v{24+r}, s[44:45]")
    a(f"""s_mov_b64 exec, s[46:47]
ds_write_b128 v7, v[20:23] offset:{L_QP}
s_waitcnt lgkmcnt(0)""")
    stamp(3)
    a("s_barrier                       ; bar1")
    endp()

    a(f"""L_H:
s_setprio 3
v_mov_b32 v4, -1
v_mov_b32 v5, -1
v_mov_b32 v6, -1
v_mov_b32 v7, -1
v_lshlrev_b32 v1, 4, v0          ; lane*16
s_getreg_b32 s7, hwreg(HW_REG_XCC_ID, 0, 3)
s_lshl_b32 s11, s6, 11
s_lshl_b32 s12, s6, 7
s_waitcnt lgkmcnt(0)
s_load_dword s13, s[40:41], {WS_E}
s_add_u32 s52, s40, s11
s_addc_u32 s53, s41, 0
s_add_u32 s54, s40, s12
s_addc_u32 s55, s41, 0
v_add_u32 v2, {WS_O}, v1
global_store_dwordx4 v2, v[4:7], s[52:53] sc1
global_store_dwordx4 v2, v[4:7], s[52:53] offset:1024 sc1
s_cmp_ge_u32 s4, 16
s_cbranch_scc1 L_H_clr2
s_lshl_b32 s11, s3, 11
s_lshl_b32 s12, s8, 7
s_add_u32 s11, s11, s12
s_add_u32 s11, s11, {WS_R}
v_add_u32 v2, s11, v1
s_mov_b64 exec, 0xff
global_store_dwordx4 v2, v[4:7], s[40:41] sc1
s_branch L_H_clr3
L_H_clr2:
s_lshl_b32 s11, s3, 5
s_lshl_b32 s12, s8, 1
s_add_u32 s11, s11, s12
s_lshl_b32 s11, s11, 11
s_add_u32 s11, s11, {WS_P}
v_add_u32 v2, s11, v1
global_store_dwordx4 v2, v[4:7], s[40:41] sc1
global_store_dwordx4 v2, v[4:7], s[40:41] offset:1024 sc1
global_store_dwordx4 v2, v[4:7], s[40:41] offset:2048 sc1
global_store_dwordx4 v2, v[4:7], s[40:41] offset:3072 sc1
s_mov_b64 exec, 0xff
L_H_clr3:
v_add_u32 v2, {WS_ML}, v1
global_store_dwordx4 v2, v[4:7], s[54:55] sc1
s_mov_b64 exec, -1
v_mov_b32 v8, 0
v_mov_b32 v9, 0
v_mov_b32 v10, 0
v_mov_b32 v11, 0
v_and_b32 v2, 31, v0
v_lshlrev_b32 v2, 4, v2
ds_write_b128 v2, v[8:11] offset:{L_QP + 28*128}
s_lshl_b32 s11, s3, 12
s_add_u32 s11, s11, {WS_A}
v_add_u32 v12, s11, v1
v_and_b32 v13, 15, v0
v_lshlrev_b32 v13, 7, v13
v_add_u32 v13, s11, v13
v_add_u32 v3, {WS_A}, v1
s_waitcnt lgkmcnt(0)
s_add_u32 s14, s13, 0x9e3779b8
s_and_b32 s14, s14, -8
s_or_b32 s15, s14, s7
v_mov_b32 v9, s15
v_mov_b32 v11, s15""")
    stamp(0)
    a("s_waitcnt vmcnt(0)")
    stamp(1)
    a(f"""s_cmp_ge_u32 s4, 16
s_cbranch_scc1 L_H_pub
s_barrier                       ; bar1
ds_read_b128 v[16:19], v1 offset:{L_QP}
ds_read_b128 v[20:23], v1 offset:{L_QP+1024}
ds_read_b128 v[24:27], v1 offset:{L_QP+2048}
ds_read_b128 v[28:31], v1 offset:{L_QP+3072}
s_waitcnt lgkmcnt(2)
v_pk_add_f32 v[16:17], v[16:17], v[20:21]
v_pk_add_f32 v[18:19], v[18:19], v[22:23]
s_waitcnt lgkmcnt(0)
v_pk_add_f32 v[24:25], v[24:25], v[28:29]
v_pk_add_f32 v[26:27], v[26:27], v[30:31]
v_pk_add_f32 v[16:17], v[16:17], v[24:25]
v_pk_add_f32 v[18:19], v[18:19], v[26:27]""")
    for r in range(4): a(f"v_add_f32_dpp v{16+r}, v{16+r}, v{16+r} row_ror:8 {DPP}")
    for r in range(4): a(f"v_mov_b32 v{20+r}, v{16+r}")
    for r in range(4): a(f"v_permlane16_swap_b32 v{20+r}, v{16+r}")
    for r in range(4): a(f"v_add_f32 v{16+r}, v{16+r}, v{20+r}")
    for r in range(4): a(f"v_mov_b32 v{20+r}, v{16+r}")
    for r in range(4): a(f"v_permlane32_swap_b32 v{20+r}, v{16+r}")
    for r in range(4): a(f"v_add_f32 v{16+r}, v{16+r}, v{20+r}")
    a(f"""v_cvt_pk_bf16_f32 v8, v16, v17
v_cvt_pk_bf16_f32 v10, v18, v19
L_H_pub:
s_mov_b64 exec, 0xff
global_store_dwordx4 v3, v[8:11], s[54:55] sc1
s_mov_b64 exec, -1""")
    stamp(2)
    a(f"""s_cmp_ge_u32 s4, 16
s_cbranch_scc1 L_H_poll0
s_barrier                       ; bar2
L_H_poll0:""")
    spin_top("L_H_poll", "L_H_got")
    a(f"""global_load_dwordx4 v[16:19], v12, s[40:41] sc1
global_load_dwordx4 v[20:23], v12, s[40:41] offset:1024 sc1
global_load_dword v24, v13, s[40:41] offset:2052 sc1
s_waitcnt vmcnt(0)
v_xor_b32 v25, s15, v17
v_xor_b32 v26, s15, v19
v_xor_b32 v27, s15, v21
v_xor_b32 v28, s15, v23
v_xor_b32 v29, s15, v24
v_or3_b32 v25, v25, v26, v27
v_or3_b32 v25, v25, v28, v29
v_cmp_lt_u32 vcc, 7, v25
s_cbranch_vccnz L_H_poll
L_H_got:
v_cmp_ne_u32 vcc, 0, v25
v_mov_b32 v17, v18
v_mov_b32 v21, v22
v_lshlrev_b32 v2, 3, v0
s_cmp_eq_u64 vcc, 0
s_cselect_b32 s9, 1, 0
ds_write_b64 v2, v[16:17] offset:{L_Q}
ds_write_b64 v2, v[20:21] offset:{L_Q+512}
v_mov_b32 v4, s9
v_mov_b32 v5, s14
v_mov_b32 v6, s13
v_mov_b32 v2, 0
ds_write_b96 v2, v[4:6] offset:{L_FL}
s_waitcnt lgkmcnt(0)""")
    stamp(3)
    a(f"""s_barrier                       ; barQ
s_mov_b32 s42, {C_SC}
v_lshrrev_b32 v2, 5, v0
v_lshlrev_b32 v2, 3, v2
v_add_u32 v2, {WS_ML}, v2
s_barrier                       ; barM
ds_read_b128 v[16:19], v1 offset:{L_SC}
s_waitcnt lgkmcnt(0)
v_max3_f32 v20, v16, v17, v18
v_max_f32 v20, v20, v19""")
    red_row("v_max_f32", "v20"); red_x16("v_max_f32", "v20", "v22")
    for r in range(4): a(f"v_sub_f32 v{16+r}, v{16+r}, v20")
    for r in range(4): a(f"v_mul_f32 v{16+r}, s42, v{16+r}")
    for r in range(4): a(f"v_exp_f32 v{16+r}, v{16+r}")
    a("v_add_f32 v16, v16, v17\nv_add_f32 v18, v18, v19\nv_add_f32 v21, v16, v18")
    red_row("v_add_f32", "v21"); red_x16("v_add_f32", "v21", "v22")
    a("s_mov_b32 exec_lo, 1\ns_mov_b32 exec_hi, 1")
    lstore("ml", ["global_store_dwordx2 v2, v[20:21], s[54:55]"])
    a("s_mov_b64 exec, -1")
    stamp(4)
    a(f"""v_lshrrev_b32 v2, 3, v0
s_lshl_b32 s11, s3, 5
v_add_u32 v2, s11, v2            ; g*32 + psub
v_lshlrev_b32 v12, 11, v2
v_and_b32 v3, 7, v0
v_lshl_add_u32 v12, v3, 4, v12
s_lshl_b32 s11, s8, 7
v_add_u32 v12, s11, v12
s_cmp_ge_u32 s4, 16
s_cbranch_scc1 L_H_s2
v_add_u32 v12, {WS_P}, v12
v_add_u32 v13, 0x4000, v12
v_add_u32 v14, 0x8000, v12
v_add_u32 v15, 0xc000, v12
s_lshl_b32 s12, s3, 11
s_add_u32 s11, s11, s12
s_add_u32 s11, s11, {WS_R}
v_lshrrev_b32 v4, 4, v0
v_lshlrev_b32 v4, 2, v4
v_lshl_add_u32 v4, v3, 4, v4
v_add_u32 v4, s11, v4
s_mov_b32 s44, 0x00ff00ff
s_mov_b32 s45, 0x00ff00ff
s_barrier                       ; barO
s_cmp_ge_u32 s8, 14
s_cbranch_scc1 L_fin""")
    stamp(5)
    spin_top("L_RS_poll", "L_RS_got")
    for i in range(4): a(f"global_load_dwordx4 v[{16+4*i}:{19+4*i}], v{12+i}, s[40:41] sc1")
    a("s_waitcnt vmcnt(0)")
    sentinel_check(range(16, 32), "v5", "L_RS_poll")
    a("L_RS_got:")
    stamp(6)
    a("""v_pk_add_f32 v[16:17], v[16:17], v[20:21]
v_pk_add_f32 v[18:19], v[18:19], v[22:23]
v_pk_add_f32 v[24:25], v[24:25], v[28:29]
v_pk_add_f32 v[26:27], v[26:27], v[30:31]
v_pk_add_f32 v[16:17], v[16:17], v[24:25]
v_pk_add_f32 v[18:19], v[18:19], v[26:27]""")
    tred4(16, "v5")
    a("""s_mov_b64 exec, s[44:45]
global_store_dword v4, v16, s[40:41] sc1""")
    stamp(7)
    a("s_barrier                       ; barR")
    endp()
    a(f"""L_H_s2:
v_add_u32 v12, {WS_O}, v12
v_add_u32 v13, 0x4000, v12
v_add_u32 v14, 0x8000, v12
v_add_u32 v15, 0xc000, v12
v_lshlrev_b32 v8, 7, v2
s_bfe_u32 s11, s8, 0x10002
s_lshl_b32 s11, s11, 3
s_add_u32 s11, s11, {WS_ML}
v_add_u32 v8, s11, v8
v_lshrrev_b32 v4, 4, v0
v_lshlrev_b32 v4, 2, v4
v_lshl_add_u32 v4, v3, 4, v4
s_barrier                       ; barO
s_barrier                       ; barF""")
    stamp(5)
    spin_top("L_ML_poll", "L_ML_got")
    for i in range(4): a(f"global_load_dwordx2 v[{32+2*i}:{33+2*i}], v8, s[40:41] offset:{1024*i} sc1")
    a("s_waitcnt vmcnt(0)")
    sentinel_check(range(32, 40), "v5", "L_ML_poll")
    a(f"""L_ML_got:
v_max3_f32 v40, v32, v34, v36
v_max_f32 v40, v40, v38
v_max_f32_dpp v40, v40, v40 row_ror:8 {DPP}""")
    red_x16("v_max_f32", "v40", "v5"); red_x32("v_max_f32", "v40", "v5")
    for i in range(4): a(f"v_sub_f32 v{32+2*i}, v{32+2*i}, v40")
    for i in range(4): a(f"v_mul_f32 v{32+2*i}, s42, v{32+2*i}")
    for i in range(4): a(f"v_exp_f32 v{32+2*i}, v{32+2*i}")
    a(f"""v_mul_f32 v41, v32, v33
v_fmac_f32 v41, v34, v35
v_fmac_f32 v41, v36, v37
v_fmac_f32 v41, v38, v39
v_add_f32_dpp v41, v41, v41 row_ror:8 {DPP}""")
    red_x16("v_add_f32", "v41", "v5"); red_x32("v_add_f32", "v41", "v5")
    a("v_rcp_f32 v41, v41")
    for i in range(4): a(f"v_mul_f32 v{32+2*i}, v{32+2*i}, v41")
    stamp(6)
    spin_top("L_O_poll", "L_O_got")
    for i in range(4): a(f"global_load_dwordx4 v[{16+4*i}:{19+4*i}], v{12+i}, s[40:41] sc1")
    a("s_waitcnt vmcnt(0)")
    sentinel_check(range(16, 32), "v5", "L_O_poll")
    a("L_O_got:")
    stamp(7)
    a("v_pk_mul_f32 v[16:17], v[16:17], v[32:33] op_sel_hi:[1,0]\nv_pk_mul_f32 v[18:19], v[18:19], v[32:33] op_sel_hi:[1,0]")
    for i in range(1, 4):
        a(f"v_pk_fma_f32 v[16:17], v[{16+4*i}:{17+4*i}], v[{32+2*i}:{33+2*i}], v[16:17] op_sel_hi:[1,0,1]")
        a(f"v_pk_fma_f32 v[18:19], v[{18+4*i}:{19+4*i}], v[{32+2*i}:{33+2*i}], v[18:19] op_sel_hi:[1,0,1]")
    tred4(16, "v5")
    a(f"""v_cvt_pk_bf16_f32 v16, v16, v16
ds_write_b32 v4, v16 offset:{L_OS}
s_waitcnt lgkmcnt(0)""")
    stamp(8)
    a("s_barrier                       ; barS")
    endp()

    a(f"""L_W2:
s_lshl_b32 s11, s3, 9
s_bfe_u32 s12, s8, 0x10002
s_lshl_b32 s12, s12, 8
s_add_u32 s11, s11, s12
s_lshr_b32 s12, s8, 3
s_lshl_b32 s12, s12, 7
s_add_u32 s11, s11, s12
s_and_b32 s12, s8, 1
s_lshl_b32 s12, s12, 6
s_add_u32 s11, s11, s12
s_bfe_u32 s12, s8, 0x10001
s_lshl_b32 s12, s12, 2
s_add_u32 s11, s11, s12
v_lshrrev_b32 v1, 3, v0
v_lshlrev_b32 v2, 3, v1
v_add_u32 v2, s11, v2
v_mul_u32_u24 v2, 896, v2
v_and_b32 v3, 7, v0
v_lshl_add_u32 v2, v3, 4, v2
s_lshl_b32 s12, s5, 7
v_add_u32 v2, s12, v2
v_lshlrev_b32 v1, 4, v1
s_lshl_b32 s11, s3, 5
s_lshl_b32 s13, s8, 1
s_add_u32 s11, s11, s13
v_lshrrev_b32 v4, 5, v0
v_add_u32 v4, s11, v4
v_lshlrev_b32 v4, 11, v4
v_lshl_add_u32 v4, v3, 5, v4
v_bfe_u32 v5, v0, 4, 1
v_lshl_add_u32 v4, v5, 4, v4
s_lshl_b32 s12, s5, 8
s_add_u32 s12, s12, {WS_P}
v_add_u32 v4, s12, v4""")
    masks(8, "v5", "v6")
    a(f"""s_mov_b32 s46, 0x00ff00ff
s_mov_b32 s47, 0xff00ff00
v_mov_b32 v5, 0
s_waitcnt lgkmcnt(0)
s_barrier                       ; barQ
ds_read_b32 v6, v5 offset:{L_FL}
s_waitcnt lgkmcnt(0)
v_readfirstlane_b32 s9, v6
s_barrier                       ; barM
s_barrier                       ; barO
s_barrier                       ; barF""")
    for t in range(4): a(f"global_load_dwordx4 v[{32+4*t}:{35+4*t}], v2, s[24:25] offset:{896*t} nt")
    stamp(0)
    if diag:
        a("s_waitcnt vmcnt(0)"); stamp(1)
    a(f"""s_barrier                       ; barS
ds_read_b128 v[12:15], v1 offset:{L_OS}
s_waitcnt lgkmcnt(0)""")
    for t in range(4):
        for d in range(4): a(f"v_and_b32 v{48+4*t+d}, v{12+t}, v{8+d}")
        a(f"s_waitcnt vmcnt({3-t})")
        c = "0" if t == 0 else "v[20:23]"
        a(f"v_mfma_f32_16x16x32_bf16 v[20:23], v[{48+4*t}:{51+4*t}], v[{32+4*t}:{35+4*t}], {c}")
    a("s_mov_b64 exec, s[46:47]")
    lstore("p", ["global_store_dwordx4 v4, v[20:23], s[40:41]"])
    stamp(2)
    endp()

    a(f"""L_S:
s_sub_u32 s5, s5, 8
s_lshl_b32 s11, s3, 25
s_lshl_b32 s12, s4, 16
s_add_u32 s11, s11, s12
s_lshl_b32 s12, s5, 13
s_add_u32 s11, s11, s12
s_add_u32 s11, s11, {61440*512 + 4096}
v_bfe_u32 v1, v0, 2, 2
v_lshlrev_b32 v1, 9, v1
v_lshrrev_b32 v3, 4, v0
v_lshlrev_b32 v4, 2, v3
v_and_b32 v5, 3, v0
v_add_u32 v4, v4, v5
v_lshlrev_b32 v6, 4, v4          ; (slab*4+qt)*16
v_add_u32 v1, v1, v6
v_lshlrev_b32 v2, 9, v3
v_and_b32 v5, 15, v0
v_lshl_add_u32 v2, v5, 4, v2
s_waitcnt lgkmcnt(0)
s_add_u32 s52, s18, s11
s_addc_u32 s53, s19, 0
s_add_u32 s54, s20, s11
s_addc_u32 s55, s21, 0""")
    def kld(i): a(f"global_load_dwordx4 v[{32+4*i}:{35+4*i}], v1, s[52:53] offset:{(i//2)*2048+(i%2)*256-4096} nt")
    def vld(i): a(f"global_load_dwordx4 v[{64+4*i}:{67+4*i}], v2, s[54:55] offset:{(i//2)*2048+(i%2)*256-4096} nt")
    KH = opt.get("khold", 4)
    for i in range(KH): kld(i)
    stamp(0)
    a("""s_cmp_ge_u32 s4, 16
s_cbranch_scc1 L_S_k2
s_barrier                       ; bar1
s_barrier                       ; bar2
L_S_k2:""")
    for i in range(KH, 8): kld(i)
    a(f"""s_cmp_ge_u32 s8, 14
s_cbranch_scc1 L_S_v
s_cmp_eq_u32 s5, 7
s_cbranch_scc1 L_S_v
s_lshl_b32 s12, s5, 6
v_add_u32 v3, s12, v0
v_lshlrev_b32 v4, 1, v3
global_load_ushort v124, v4, s[16:17]
s_cmp_ge_u32 s5, 4
s_cbranch_scc1 L_S_v
v_mul_u32_u24 v4, 14, v3
v_and_b32 v5, 1, v0
v_lshlrev_b32 v5, 1, v5
v_sub_u32 v4, v4, v5
global_load_dwordx4 v[112:115], v4, s[28:29]
global_load_dwordx4 v[116:119], v4, s[30:31]
global_load_dwordx4 v[120:123], v4, s[32:33]
v_mov_b32 v5, 0
global_load_ushort v125, v5, s[34:35]
global_load_ushort v126, v5, s[36:37]
L_S_v:
s_cmp_eq_u32 s5, 7
s_cbranch_scc1 L_S_q""")
    for i in range(8): vld(i)
    a("L_S_q:")
    stamp(1)
    masks(8, "v4", "v5")
    a(f"""v_bfe_u32 v3, v0, 3, 1
v_lshl_add_u32 v6, v3, 9, v6
v_lshrrev_b32 v4, 4, v0
s_lshl_b32 s12, s5, 2
v_add_u32 v7, s12, v4
v_lshlrev_b32 v7, 4, v7
v_lshl_add_u32 v7, v3, 9, v7
v_lshlrev_b32 v4, 3, v4
v_and_b32 v5, 7, v0
v_add_u32 v4, v4, v5
v_lshlrev_b32 v4, 4, v4
v_lshl_add_u32 v3, v3, 9, v4
s_mov_b32 s42, {C_SC}
s_mov_b32 s44, 0x01010101
s_mov_b32 s45, 0x01010101
v_mov_b32 v5, 0
s_barrier                       ; barQ""")
    stamp(2)
    a("s_cmp_lg_u32 s5, 7\ns_cbranch_scc1 L_S_qk")
    for i in range(8): vld(i)
    a(f"""L_S_qk:
ds_read_b128 v[12:15], v6 offset:{L_Q}
ds_read_b128 v[16:19], v6 offset:{L_Q+256}
ds_read_b96 v[20:22], v5 offset:{L_FL}
s_waitcnt vmcnt(8) lgkmcnt(0)""")
    stamp(3)
    for hf in range(2):
        for t in range(4):
            c = "0" if hf == 0 else f"v[{96+4*t}:{99+4*t}]"
            a(f"v_mfma_f32_16x16x32_bf16 v[{96+4*t}:{99+4*t}], v[{32+8*t+4*hf}:{35+8*t+4*hf}], v[{12+4*hf}:{15+4*hf}], {c}")
    a("v_readfirstlane_b32 s9, v20\nv_readfirstlane_b32 s14, v21\nv_readfirstlane_b32 s13, v22")
    for r in range(4):
        for t in range(4):
            q = f"quad_perm:[{r},{r},{r},{r}]"
            if r == 0: a(f"v_mov_b32_dpp v{28+t}, v{96+4*t} {q} {DPP}")
            else: a(f"v_add_f32_dpp v{28+t}, v{96+4*t+r}, v{28+t} {q} {DPP}")
    for t in range(4): a(f"v_cvt_pk_bf16_f32 v{28+t}, v{28+t}, v{28+t}")
    for t in range(4): a(f"v_lshlrev_b32 v{28+t}, 16, v{28+t}")
    a(f"""s_mov_b64 exec, s[44:45]
ds_write_b128 v7, v[28:31] offset:{L_SC}
s_mov_b64 exec, -1
s_waitcnt lgkmcnt(0)
s_barrier                       ; barM
ds_read_b128 v[12:15], v3 offset:{L_SC}
s_waitcnt lgkmcnt(0)
v_max3_f32 v4, v12, v13, v14
v_max_f32 v4, v4, v15""")
    for m in ("quad_perm:[1,0,3,2]", "quad_perm:[2,3,0,1]", "row_half_mirror"):
        a(f"v_max_f32_dpp v4, v4, v4 {m} {DPP}")
    red_x16("v_max_f32", "v4", "v5"); red_x32("v_max_f32", "v4", "v5")
    for t in range(4): a(f"v_sub_f32 v{28+t}, v{28+t}, v4")
    for t in range(4): a(f"v_mul_f32 v{28+t}, s42, v{28+t}")
    for t in range(4): a(f"v_exp_f32 v{28+t}, v{28+t}")
    for t in range(4): a(f"v_cvt_pk_bf16_f32 v{28+t}, v{28+t}, v{28+t}")
    for t in range(4):
        for d in range(4): a(f"v_and_b32 v{96+4*t+d}, v{28+t}, v{8+d}")
    a("v_lshlrev_b32 v1, 4, v0")
    stamp(4)
    a("s_cmp_eq_u32 s5, 7\ns_cbranch_scc1 L_F")
    def pv(first_zero):
        for i in range(8):
            t, hf = i // 2, i % 2
            a(f"s_waitcnt vmcnt({7-i})")
            if i == 7: stamp(6)
            c = "0" if (t == 0 and first_zero) else f"v[{20+4*hf}:{23+4*hf}]"
            a(f"v_mfma_f32_16x16x32_bf16 v[{20+4*hf}:{23+4*hf}], v[{96+4*t}:{99+4*t}], v[{64+4*i}:{67+4*i}], {c}")
    pv(True)
    a(f"""s_lshl_b32 s12, s5, 11
v_add_u32 v2, s12, v1
ds_write_b128 v2, v[20:23] offset:{L_OP}
ds_write_b128 v2, v[24:27] offset:{L_OP+1024}
s_waitcnt lgkmcnt(0)""")
    stamp(5)
    a(f"""s_barrier                       ; barO
s_cmp_ge_u32 s8, 14
s_cbranch_scc1 L_fin
s_mov_b32 s43, 0xffff0000
v_lshlrev_b32 v124, 16, v124
s_lshl_b32 s12, s5, 6
v_add_u32 v2, s12, v0
v_lshlrev_b32 v2, 2, v2          ; column*4
v_add_u32 v3, {WS_R + 4096}, v2
v_add_u32 v4, {WS_R + 4096 + 8192}, v2
s_cmp_lg_u32 s5, 4
s_cbranch_scc1 L_A_nochk
v_lshrrev_b32 v5, 4, v0
v_lshlrev_b32 v5, 12, v5
v_and_b32 v6, 15, v0
v_lshl_add_u32 v5, v6, 7, v5
v_add_u32 v5, {WS_A + 4}, v5
v_add_u32 v6, 0x4000, v5""")
    spin_top("L_G_poll", "L_A_nochk")
    a(f"""global_load_dword v12, v5, s[40:41] sc1
global_load_dword v13, v6, s[40:41] sc1
s_waitcnt vmcnt(0)
v_xor_b32 v12, s14, v12
v_xor_b32 v13, s14, v13
v_or_b32 v12, v12, v13
v_cmp_lt_u32 vcc, 7, v12
s_cbranch_vccnz L_G_poll
L_A_nochk:
s_cmp_ge_u32 s5, 4
s_cbranch_scc1 L_A_wait
v_and_b32 v5, 1, v0
v_lshlrev_b32 v5, 4, v5""")
    for k in range(3):
        r = 112 + 4 * k; o = 64 + 8 * k
        for j in range(3): a(f"v_alignbit_b32 v{r+j}, v{r+j+1}, v{r+j}, v5")
        a(f"v_lshrrev_b32 v{r+3}, v5, v{r+3}")
        for j in range(3): a(f"v_lshlrev_b32 v{o+2*j}, 16, v{r+j}\nv_and_b32 v{o+2*j+1}, s43, v{r+j}")
        a(f"v_lshlrev_b32 v{o+6}, 16, v{r+3}")
    a(f"""v_mov_b32 v88, {f2u(GK0)}
v_mov_b32 v89, {f2u(GK1)}
v_mov_b32 v90, 1.0
v_lshlrev_b32 v125, 16, v125
s_mul_i32 s11, s3, 56
s_lshl_b32 s12, s8, 1
s_add_u32 s11, s11, s12
s_cmp_ge_u32 s4, 16
s_cselect_b32 s12, 28, 0
s_add_u32 s11, s11, s12          ; d0
s_lshl_b32 s12, s11, 2
v_mov_b32 v91, s12
v_lshlrev_b32 v92, 2, v0
s_mov_b32 s48, {f2u(1.0/448)}
s_mov_b32 s49, {f2u(1e-5)}
L_A_wait:
s_cmp_lt_u32 s4, 16
s_cbranch_scc1 L_A_w2
s_barrier                       ; barF
L_A_w2:
s_barrier""")
    stamp(7)
    spin_top("L_A_poll", "L_A_got")
    for gI in range(8):
        a(f"global_load_dword v{32+gI}, v{3 + gI//4}, s[40:41] offset:{(gI%4)*2048-4096} sc1")
    a("s_waitcnt vmcnt(0)")
    sentinel_check(range(32, 40), "v5", "L_A_poll")
    a("L_A_got:")
    stamp(8)
    a("""v_pk_add_f32 v[32:33], v[32:33], v[34:35]
v_pk_add_f32 v[36:37], v[36:37], v[38:39]
v_pk_add_f32 v[32:33], v[32:33], v[36:37]
v_add_f32 v32, v32, v33""")
    rbf("v32", "v32")
    a("v_add_f32 v32, v32, v124")
    rbf("v32", "v32")
    a(f"""ds_write_b32 v2, v32 offset:{L_HS}
s_waitcnt lgkmcnt(0)
s_barrier                       ; barH
s_cmp_ge_u32 s5, 4
s_cbranch_scc1 L_fin""")
    for i in range(3): a(f"ds_read2st64_b32 v[{32+2*i}:{33+2*i}], v92 offset0:{L_HS//256+2*i} offset1:{L_HS//256+2*i+1}")
    a(f"""ds_read_b32 v38, v92 offset:{L_HS+6*256}
ds_read_b64 v[94:95], v91 offset:{L_HS}
s_waitcnt lgkmcnt(0)""")
    stamp(9)
    for i in range(3): a(f"v_pk_add_f32 v[{32+2*i}:{33+2*i}], v[{32+2*i}:{33+2*i}], v[94:95] op_sel_hi:[1,0] neg_lo:[0,1] neg_hi:[0,1]")
    a("""v_sub_f32 v38, v38, v94
v_pk_mul_f32 v[42:43], v[32:33], v[32:33]
v_pk_add_f32 v[44:45], v[32:33], v[34:35]
v_pk_fma_f32 v[42:43], v[34:35], v[34:35], v[42:43]
v_pk_add_f32 v[44:45], v[44:45], v[36:37]
v_pk_fma_f32 v[42:43], v[36:37], v[36:37], v[42:43]
v_add_f32 v44, v44, v45
v_add_f32 v42, v42, v43
v_add_f32 v44, v44, v38
v_fmac_f32 v42, v38, v38""")
    for m in ("quad_perm:[1,0,3,2]", "quad_perm:[2,3,0,1]", "row_half_mirror", "row_mirror"):
        a(f"v_add_f32_dpp v44, v44, v44 {m} {DPP}\nv_add_f32_dpp v42, v42, v42 {m} {DPP}")
    for sw in ("v_permlane16_swap_b32", "v_permlane32_swap_b32"):
        a(f"v_mov_b32 v45, v44\nv_mov_b32 v43, v42\n{sw} v45, v44\n{sw} v43, v42\nv_add_f32 v44, v44, v45\nv_add_f32 v42, v42, v43")
    a("""v_mul_f32 v44, s48, v44          ; mean - c
v_mul_f32 v42, s48, v42
v_fma_f32 v42, -v44, v44, v42    ; var
v_max_f32 v42, 0, v42
v_add_f32 v43, s49, v42
v_fma_f32 v42, v43, s49, v42
v_rsq_f32 v42, v42
v_sub_f32 v47, v95, v94
v_sub_f32 v47, v47, v44
v_sub_f32 v46, 0, v44
v_pk_mul_f32 v[46:47], v[46:47], v[42:43] op_sel_hi:[1,0]""")
    stamp(10)
    def bc(base, i, pos):
        r = base + (i & ~1)
        return f"v[{r}:{r+1}]", i & 1
    for i in range(7):
        w, s1 = bc(64, i, 1); b, s2 = bc(72, i, 2)
        a(f"v_pk_fma_f32 v[{32+2*i}:{33+2*i}], v[46:47], {w}, {b} op_sel:[0,{s1},{s2}] op_sel_hi:[1,{s1},{s2}]")
    for i in range(7): a(f"v_pk_mul_f32 v[{48+2*i}:{49+2*i}], v[{32+2*i}:{33+2*i}], v[{32+2*i}:{33+2*i}]")
    for i in range(7): a(f"v_pk_fma_f32 v[{48+2*i}:{49+2*i}], v[{48+2*i}:{49+2*i}], v[88:89], v[88:89] op_sel:[0,1,0] op_sel_hi:[1,1,0]")
    for i in range(7): a(f"v_pk_mul_f32 v[{48+2*i}:{49+2*i}], v[{48+2*i}:{49+2*i}], v[{32+2*i}:{33+2*i}]")
    for i in range(14): a(f"v_exp_f32 v{48+i}, v{48+i}")
    for i in range(7):
        w, s1 = bc(80, i, 1)
        a(f"v_pk_mul_f32 v[{32+2*i}:{33+2*i}], v[{32+2*i}:{33+2*i}], {w} op_sel:[0,{s1}] op_sel_hi:[1,{s1}]")
    for i in range(7): a(f"v_pk_add_f32 v[{48+2*i}:{49+2*i}], v[{48+2*i}:{49+2*i}], v[90:91] op_sel_hi:[1,0]")
    for i in range(14): a(f"v_rcp_f32 v{48+i}, v{48+i}")
    a("v_pk_mul_f32 v[20:21], v[32:33], v[48:49]")
    for i in range(1, 7): a(f"v_pk_fma_f32 v[20:21], v[{32+2*i}:{33+2*i}], v[{48+2*i}:{49+2*i}], v[20:21]")
    stamp(11)
    a("v_permlane32_swap_b32 v20, v21\nv_add_f32 v20, v20, v21")
    red_row("v_add_f32", "v20")
    a(f"""v_add_f32_dpp v20, v20, v20 row_bcast:15 row_mask:0xa bank_mask:0xf
v_lshrrev_b32 v2, 5, v0
v_lshlrev_b32 v2, 4, v2
s_lshl_b32 s12, s5, 2
v_add_u32 v2, s12, v2
s_mov_b32 exec_lo, 0x10000
s_mov_b32 exec_hi, 0x10000
ds_write_b32 v2, v20 offset:{L_YS}
s_mov_b64 exec, 3
v_lshlrev_b32 v2, 4, v0
v_cmp_eq_u32 vcc, 1, v0
v_cndmask_b32 v94, v94, v95, vcc
s_lshl_b32 s12, s11, 1
v_lshl_add_u32 v3, v0, 1, s12
s_waitcnt lgkmcnt(0)
s_barrier                       ; barY
s_cmp_lg_u32 s5, 0
s_cbranch_scc1 L_fin
ds_read_b128 v[20:23], v2 offset:{L_YS}
s_waitcnt lgkmcnt(0)
v_add_f32 v20, v20, v21
v_add_f32 v22, v22, v23
v_add_f32 v20, v20, v22""")
    rbf("v20", "v20")
    a("v_add_f32 v20, v20, v125"); rbf("v20", "v20")
    a("v_add_f32 v20, v20, v94\nv_cvt_pk_bf16_f32 v20, v20, v20\nglobal_store_short v3, v20, s[36:37]")
    stamp(12)
    a(f"""s_cmp_lg_u32 s2, 0
s_cbranch_scc1 L_fin
s_add_u32 s13, s13, 8
v_mov_b32 v4, s13
v_mov_b32 v5, 0
s_mov_b64 exec, 1
global_store_dword v5, v4, s[40:41] offset:{WS_E}
L_fin:""")
    endp()
    quads = [32,36,40,44,48,52,56, 60,112,116,120,124,12,16]
    a(f"""L_F:
s_lshl_b32 s12, s6, 11
s_add_u32 s12, s12, {WS_O}
v_add_u32 v2, s12, v1
s_barrier                       ; barO""")
    for w in range(7):
        for hf in range(2):
            q = quads[hf*7 + w]
            a(f"ds_read_b128 v[{q}:{q+3}], v1 offset:{L_OP + w*2048 + hf*1024}")
    a("s_waitcnt lgkmcnt(0)")
    for hf in range(2):
        Q = quads[hf*7:hf*7+7]
        for h in (0, 2):
            a(f"v_pk_add_f32 v[{Q[0]+h}:{Q[0]+h+1}], v[{Q[0]+h}:{Q[0]+h+1}], v[{Q[1]+h}:{Q[1]+h+1}]")
            a(f"v_pk_add_f32 v[{Q[2]+h}:{Q[2]+h+1}], v[{Q[2]+h}:{Q[2]+h+1}], v[{Q[3]+h}:{Q[3]+h+1}]")
            a(f"v_pk_add_f32 v[{Q[4]+h}:{Q[4]+h+1}], v[{Q[4]+h}:{Q[4]+h+1}], v[{Q[5]+h}:{Q[5]+h+1}]")
            a(f"v_pk_add_f32 v[{Q[0]+h}:{Q[0]+h+1}], v[{Q[0]+h}:{Q[0]+h+1}], v[{Q[6]+h}:{Q[6]+h+1}]")
            a(f"v_pk_add_f32 v[{Q[2]+h}:{Q[2]+h+1}], v[{Q[2]+h}:{Q[2]+h+1}], v[{Q[4]+h}:{Q[4]+h+1}]")
            a(f"v_pk_add_f32 v[{20+4*hf+h}:{21+4*hf+h}], v[{Q[0]+h}:{Q[0]+h+1}], v[{Q[2]+h}:{Q[2]+h+1}]")
    stamp(5)
    pv(False)
    lstore("o", ["global_store_dwordx4 v2, v[20:23], s[40:41]", "global_store_dwordx4 v2, v[24:27], s[40:41] offset:1024"])
    stamp(7)
    a("""s_cmp_lt_u32 s4, 16
s_cbranch_scc1 L_fin2
s_barrier                       ; barF
L_fin2:""")
    endp()
    if diag:
        a(f"""L_dump:
s_memtime s[94:95]
s_memrealtime s[96:97]
s_mov_b64 exec, -1
v_mov_b32 v0, 0
s_getreg_b32 s7, hwreg(HW_REG_XCC_ID, 0, 3)
s_getreg_b32 s98, hwreg(HW_REG_HW_ID)
s_waitcnt lgkmcnt(0)""")
        regs = [60, 62] + [64 + 2*i for i in range(16)] + [96, 7]
        for i, r in enumerate(regs): a(f"v_mov_b32 v{4+i}, s{r}")
        a(f"""s_lshl_b32 s11, s2, 4
s_add_u32 s11, s11, s99
s_lshl_b32 s11, s11, 7
s_add_u32 s11, s11, {TS_OFF}
s_add_u32 s40, s40, s11
s_addc_u32 s41, s41, 0
s_mov_b64 exec, 1""")
        for i in range(0, 20, 4): a(f"global_store_dwordx4 v0, v[{4+i}:{7+i}], s[40:41] offset:{i*4}")
        a("s_endpgm")
    a("L_exit:\ns_endpgm")
    n = a.fix()
    body = a.text()
    if diag:
        body = body.replace("    s_lshr_b32 s4, s2, 3\n", "    s_lshr_b32 s4, s2, 3\n    s_mov_b32 s99, s5\n", 1)
    ref = open("cdna_kernels/" + NAME + ".s.ref").read() if not opt.get("nohdr") else ""
    hdr = ref.split("; @launch")[0] if ref else ""
    out = hdr + f"""; @launch grid=(256,1,1) block=(1024,1,1) lds={LDS_BYTES}
.amdgcn_target "amdgcn-amd-amdhsa--gfx950"
.text
.globl {KNAME}
.p2align 8
.type {KNAME},@function
{KNAME}:
""" + body + f""".section .rodata,"a"
.p2align 6
.amdhsa_kernel {KNAME}
  .amdhsa_next_free_vgpr 128
  .amdhsa_next_free_sgpr 102
  .amdhsa_accum_offset 128
  .amdhsa_group_segment_fixed_size 0
  .amdhsa_kernarg_size 104
  .amdhsa_user_sgpr_count 2
  .amdhsa_user_sgpr_kernarg_segment_ptr 1
  .amdhsa_system_sgpr_workgroup_id_x 1
  .amdhsa_float_denorm_mode_32 3
.end_amdhsa_kernel
"""
    return out

if __name__ == "__main__":
    open("k1.s", "w").write(gen())
    open("k1d.s", "w").write(gen(diag=True))
```

```python
import sys, struct, os
from asmx import Asm
NAME = "sequential_preLN__sliding_block_cached__mixer_token_mlp__decode"
KNAME = NAME + "_kernel"
WS_E  = 0x0
WS_ML = 0x8000
WS_A  = 0x10000
WS_O  = 0x20000
WS_P  = 0xA0000
WS_H  = 0x120000
WS_B  = 0x128000
WS_G  = 0x130000
WS_I  = 0x140000
WS_S  = 0x124000
WS_M  = 0x1C0000
TS_OFF = 256 << 20
L_QP, L_Q, L_SC, L_FL, L_OS, L_HS, L_YS, L_OP = 0, 4096, 5120, 6144, 6400, 6656, 8448, 10240
LDS_BYTES = 24576
L_TS = 24576
SPIN = 1 << 18
def f2u(x): return struct.unpack("<I", struct.pack("<f", x))[0]
LOG2E = 1.4426950408889634
C_SC = f2u(0.0625 * LOG2E)
GK0 = -2.0 * 0.7978845608028654 * LOG2E
GK1 = GK0 * 0.044715
DPP = "row_mask:0xf bank_mask:0xf"
NEG1 = "op_sel_hi:[1,0] neg_lo:[0,1] neg_hi:[0,1]"

def gen(diag=False, **opt):
    KH = opt.get("khold", 3)
    PD0 = opt.get("pd0", 0); PD1 = opt.get("pd1", 0)
    WO = opt.get("wo", dict(W=2))
    VP = opt.get("vp", 8); FQ = opt.get("fq", 8)
    KLOC = opt.get("kloc", 64)
    KEEP = opt.get("keep")
    NP = opt.get("np", 3); NI = opt.get("ni", 8); NH = opt.get("nh", 1)
    SIDE = opt.get("side", "vote")
    a = Asm()
    def stamp(i):
        if diag and (KEEP is None or i in KEEP): a(f"s_memtime s[{64+2*i}:{65+2*i}]")
    def cnt(i):
        if diag: a(f"s_add_u32 s{64+2*i}, s10, 1")
    def zst():
        if diag:
            for i in range(64, 94, 2): a(f"s_mov_b32 s{i}, 0")
            a("s_memrealtime s[60:61]\ns_memtime s[58:59]")
    def endp(): a("s_branch L_dump" if diag else "s_endpgm")
    def red_row(op, r):
        for m in ("quad_perm:[1,0,3,2]", "quad_perm:[2,3,0,1]", "row_half_mirror", "row_mirror"):
            a(f"{op}_dpp {r}, {r}, {r} {m} {DPP}")
    def red_x16(op, r, t): a(f"v_mov_b32 {t}, {r}\nv_permlane16_swap_b32 {t}, {r}\n{op} {r}, {r}, {t}")
    def red_x32(op, r, t): a(f"v_mov_b32 {t}, {r}\nv_permlane32_swap_b32 {t}, {r}\n{op} {r}, {r}, {t}")
    def allred(op, r, t):
        red_row(op, r); red_x16(op, r, t); red_x32(op, r, t)
    def red_hi(op, r, t):
        a(f"{op}_dpp {r}, {r}, {r} row_ror:8 {DPP}\n{op}_dpp {r}, {r}, {r} row_ror:4 {DPP}")
        red_x16(op, r, t); red_x32(op, r, t)
    def tred(r0, dst):
        a(f"""v_permlane32_swap_b32 v{r0}, v{r0+2}
v_permlane32_swap_b32 v{r0+1}, v{r0+3}
v_pk_add_f32 v[{r0}:{r0+1}], v[{r0}:{r0+1}], v[{r0+2}:{r0+3}]
v_permlane16_swap_b32 v{r0}, v{r0+1}
v_add_f32 v{dst}, v{r0}, v{r0+1}
v_add_f32_dpp v{dst}, v{dst}, v{dst} row_ror:8 {DPP}
v_add_f32_dpp v{dst}, v{dst}, v{dst} row_ror:4 {DPP}""")
    def rbf(dst, src):
        a(f"v_cvt_pk_bf16_f32 {dst}, {src}, {src}\nv_lshlrev_b32 {dst}, 16, {dst}")
    def masks(m0, t0, t1):
        a(f"""v_and_b32 {t0}, 1, v0
v_lshlrev_b32 {t0}, 4, {t0}
v_mov_b32 {t1}, 0xffff
v_lshlrev_b32 {t0}, {t0}, {t1}
v_bfe_u32 {t1}, v0, 1, 2""")
        for d in range(4): a(f"v_cmp_eq_u32 s[{44+2*d}:{45+2*d}], {d}, {t1}")
        for d in range(4): a(f"v_cndmask_b32 v{m0+d}, 0, {t0}, s[{44+2*d}:{45+2*d}]")
    def lstore(tag, ins):
        a(f"s_cmp_eq_u32 s9, 1\ns_cbranch_scc1 L_{tag}_f")
        for i in ins: a(i + " sc1")
        a(f"s_branch L_{tag}_d\nL_{tag}_f:")
        for i in ins: a(i)
        a(f"L_{tag}_d:")
    def spin_top(lbl, done):
        a(f"s_mov_b32 s10, {SPIN}\n{lbl}:\ns_sub_u32 s10, s10, 1\ns_cbranch_scc1 {done}")
    def ppoll(name, N, nld, issue, check, finish, pace=0):
        for k in range(N - 1):
            issue(k)
            if pace: a(f"s_sleep {pace}")
        a(f"s_mov_b32 s10, {SPIN}\nL_{name}_poll:")
        for k in range(N):
            issue((k + N - 1) % N)
            if pace: a(f"s_sleep {pace}")
            a(f"s_waitcnt vmcnt({(N - 1) * nld})")
            check(k)
            a(f"s_cbranch_vccz L_{name}_g{k}")
        a(f"s_sub_u32 s10, s10, 1\ns_cbranch_scc0 L_{name}_poll")
        for k in range(N - 1, -1, -1):
            a(f"L_{name}_g{k}:")
            finish(k)
            if k: a(f"s_branch L_{name}_got")
        a(f"L_{name}_got:")
    def sleep(n):
        if n: a(f"s_sleep {n}")
    def bar(name): a(f"s_barrier                       ; {name}")
    def xtag(t, regs, tag="s14"):
        a(f"v_xor_b32 {t}, {tag}, v{regs[0]}")
        for r in regs[1:]: a(f"v_bitop3_b32 {t}, v{r}, {tag}, {t} bitop3:0xbe")

    if diag: a("s_memtime s[62:63]")
    a(f"""s_cmp_ge_u32 s2, 256
s_cbranch_scc1 L_exit
s_load_dwordx16 s[16:31], s[0:1], 0
s_load_dwordx8 s[32:39], s[0:1], 64
s_load_dwordx2 s[40:41], s[0:1], 96
v_lshrrev_b32 v1, 6, v0
v_and_b32 v0, 63, v0
s_and_b32 s3, s2, 7
v_readfirstlane_b32 s5, v1
s_lshr_b32 s4, s2, 3             ; member
s_sub_u32 s5, s5, 1
s_cmp_ge_u32 s5, 7
s_cbranch_scc1 L_HS
s_lshr_b32 s11, s4, 4
s_mul_i32 s11, s11, 7
s_add_u32 s11, s11, s5           ; row0 / 32
v_lshrrev_b32 v2, 3, v0
v_lshlrev_b32 v1, 15, v2
v_bfe_u32 v3, v0, 2, 1
v_lshl_add_u32 v1, v3, 13, v1
v_and_b32 v3, 3, v0
v_lshl_add_u32 v1, v3, 4, v1
s_lshl_b32 s12, s11, 6
v_lshl_add_u32 v2, v2, 3, s12
v_min_u32 v3, 55, v0
v_lshlrev_b32 v3, 4, v3
s_lshl_b32 s11, s11, 8
s_add_u32 s11, s11, s3
s_lshl_b32 s11, s11, 4
s_and_b32 s8, s4, 15
s_add_u32 s11, s11, s8
s_lshl_b32 s11, s11, 6
v_add_u32 v4, 0x4000, v1
s_waitcnt lgkmcnt(0)
s_add_u32 s22, s22, s11
s_addc_u32 s23, s23, 0
global_load_dwordx4 v[12:15], v3, s[16:17]
global_load_dwordx2 v[16:17], v2, s[16:17]
global_load_dwordx4 v[32:35], v1, s[22:23] nt
global_load_dwordx4 v[36:39], v4, s[22:23] nt
s_branch L_WQ""")
    a(f"""L_HS:
s_lshl_b32 s6, s3, 5
s_add_u32 s6, s6, s4
s_sub_u32 s5, s5, 7
s_lshl_b32 s11, s3, 25
s_lshl_b32 s12, s4, 16
s_add_u32 s11, s11, s12
s_lshl_b32 s12, s5, 13
s_add_u32 s11, s11, s12
s_add_u32 s11, s11, {61440*512 + 4096}
s_cmp_eq_u32 s5, -8
s_cbranch_scc1 L_H
v_bfe_u32 v1, v0, 2, 2
v_lshlrev_b32 v1, 9, v1
v_lshrrev_b32 v3, 4, v0
v_lshlrev_b32 v4, 2, v3
v_and_b32 v5, 3, v0
v_add_u32 v4, v4, v5
v_lshlrev_b32 v6, 4, v4          ; (slab*4+qt)*16
v_add_u32 v1, v1, v6
v_lshlrev_b32 v2, 9, v3
v_and_b32 v5, 15, v0
v_lshl_add_u32 v2, v5, 4, v2
s_waitcnt lgkmcnt(0)
s_add_u32 s52, s18, s11
s_addc_u32 s53, s19, 0
s_add_u32 s54, s20, s11
s_addc_u32 s55, s21, 0""")
    def kld(i): a(f"global_load_dwordx4 v[{32+4*i}:{35+4*i}], v1, s[52:53] offset:{(i//2)*2048+(i%2)*256-4096} nt")
    def vld(i): a(f"global_load_dwordx4 v[{64+4*i}:{67+4*i}], v2, s[54:55] offset:{(i//2)*2048+(i%2)*256-4096} nt")
    for i in range(KH): kld(i)
    zst(); stamp(0)
    a("s_branch L_S")

    a(f"""L_H:
s_setprio 3
v_lshlrev_b32 v1, 4, v0          ; lane*16
s_getreg_b32 s7, hwreg(HW_REG_XCC_ID, 0, 3)
s_lshl_b32 s12, s6, 7
v_mov_b32 v8, 0
v_mov_b32 v9, 0
v_mov_b32 v10, 0
v_mov_b32 v11, 0
v_and_b32 v2, 31, v0
v_lshlrev_b32 v2, 4, v2
ds_write_b128 v2, v[8:11] offset:{L_QP + 28*128}""")
    if diag: a(f"ds_write_b128 v2, v[8:11] offset:{L_TS + 2048}")
    a(f"""s_lshl_b32 s11, s3, 13
s_add_u32 s11, s11, {WS_A + 4096}
v_add_u32 v12, s11, v1
v_and_b32 v3, 7, v0
v_lshlrev_b32 v3, 5, v3
v_lshrrev_b32 v2, 5, v0
v_lshl_add_u32 v3, v2, 4, v3
s_lshl_b32 s11, s6, 8
s_add_u32 s11, s11, {WS_A}
v_add_u32 v3, s11, v3
s_mov_b32 s50, 0xff
s_mov_b32 s51, 0xff""")
    if SIDE == "vote":
        a(f"""; two private lines (address bit 13 = member parity first): the one that answers faster lies on this XCD's side of the chip
s_lshr_b32 s11, s6, 6
s_lshl_b32 s11, s11, 14
s_and_b32 s42, s6, 63
s_lshl_b32 s42, s42, 7
s_add_u32 s11, s11, s42
s_and_b32 s43, s4, 1
s_lshl_b32 s42, s43, 13
s_add_u32 s11, s11, s42
s_add_u32 s11, s11, {WS_M}
s_xor_b32 s42, s11, 0x2000""")
    a("s_waitcnt lgkmcnt(0)")
    if SIDE == "vote":
        a(f"""s_memtime s[44:45]
s_waitcnt lgkmcnt(0)
s_load_dword s48, s[40:41], s11""")
    a(f"s_load_dword s13, s[40:41], {WS_E}")
    a(f"""s_add_u32 s54, s40, s12
s_addc_u32 s55, s41, 0
""")
    HW = opt.get("hw", "AM")
    if HW:
        a("; values unused: a line that is stored later is only served from L2 once it has been read")
        if "A" in HW: a("s_mov_b64 exec, s[50:51]\nglobal_load_dword v14, v3, s[40:41] nt\ns_mov_b64 exec, -1")
        if "M" in HW: a(f"v_mov_b32 v2, {WS_ML}\ns_mov_b64 exec, 1\nglobal_load_dword v14, v2, s[54:55] nt\ns_mov_b64 exec, -1")
        if "H" in HW: a(f"s_lshl_b32 s12, s6, 6\ns_add_u32 s12, s12, {WS_H}\nv_mov_b32 v2, s12\ns_mov_b64 exec, 1\nglobal_load_dword v14, v2, s[40:41] nt\ns_mov_b64 exec, -1")
        if "I" in HW:
            a(f"""s_min_u32 s12, s4, 27
s_lshr_b32 s15, s12, 3
s_lshl_b32 s15, s15, 14
s_and_b32 s12, s12, 7
s_lshl_b32 s12, s12, 10
s_add_u32 s12, s12, s15
s_lshl_b32 s15, s3, 16
s_add_u32 s12, s12, s15
s_add_u32 s12, s12, {WS_I}
v_and_b32 v2, 7, v0
v_lshlrev_b32 v2, 7, v2
v_bfe_u32 v13, v0, 3, 1
v_lshl_add_u32 v2, v13, 13, v2
v_add_u32 v2, s12, v2
s_mov_b64 exec, 0xffff
global_load_dword v14, v2, s[40:41] nt
s_mov_b64 exec, -1""")
    a(f"""s_cmp_lt_u32 s4, 28
s_cbranch_scc1 L_H_1
s_getpc_b64 s[56:57]
L_pc:
s_sub_u32 s56, s56, L_pc-{KNAME}
s_subb_u32 s57, s57, 0
v_lshlrev_b32 v2, 7, v0
v_min_u32 v13, L_exit-{KNAME}, v2
global_load_dword v14, v13, s[56:57]
v_add_u32 v2, 0x2000, v2
v_min_u32 v13, L_exit-{KNAME}, v2
global_load_dword v14, v13, s[56:57]
L_H_1:""")
    a("s_waitcnt lgkmcnt(0)")
    if SIDE == "vote":
        a(f"""s_memtime s[46:47]
s_waitcnt lgkmcnt(0)
s_sub_u32 s49, s46, s44
s_load_dword s48, s[40:41], s42
s_waitcnt lgkmcnt(0)
s_memtime s[44:45]
s_waitcnt lgkmcnt(0)
s_sub_u32 s48, s44, s46
s_cmp_le_u32 s49, s48
s_cselect_b32 s48, 0, 1
s_xor_b32 s48, s48, s43
s_lshl_b32 s48, s48, 3
s_or_b32 s7, s7, s48""")
    a(f"""s_add_u32 s14, s13, 0x9e3779b0
s_and_b32 s14, s14, -16
s_or_b32 s15, s14, s7            ; own tag: base | vote << 3 | xcc
v_mov_b32 v9, s15
v_mov_b32 v11, s15""")
    zst()
    stamp(0)
    a("s_branch L_H2")

    a(f"""L_WQ:
s_setprio 2
s_lshl_b32 s6, s3, 5
s_add_u32 s6, s6, s4
v_mov_b32 v4, -1
v_mov_b32 v5, -1
v_mov_b32 v6, -1
v_mov_b32 v7, -1
s_lshl_b32 s12, s6, 11
s_add_u32 s13, s12, {WS_O}
s_lshl_b32 s11, s5, 10
s_add_u32 s11, s11, s13
s_cmp_lt_u32 s5, 2
s_cselect_b32 s11, s11, s13
s_cselect_b64 exec, -1, 1
v_lshl_add_u32 v1, v0, 4, s11""")
    EW = opt.get("ew", "OP"); EF = opt.get("ef", "nt")
    if "O" in EW: a(f"global_load_dwordx4 v[44:47], v1, s[40:41] {EF}")
    a(f"""global_store_dwordx4 v1, v[4:7], s[40:41]
s_mov_b64 exec, -1
v_and_b32 v3, 7, v0
v_lshlrev_b32 v40, 5, v3
v_bfe_u32 v2, v0, 4, 1
v_lshl_add_u32 v40, v2, 4, v40
v_lshrrev_b32 v2, 5, v0
v_lshl_add_u32 v40, v2, 3, v40
s_lshl_b32 s11, s5, 8
s_add_u32 s11, s11, s12
s_add_u32 s11, s11, {WS_P}
v_add_u32 v40, s11, v40
s_mov_b32 s56, 0x00ff00ff
s_mov_b32 s57, 0x00ff00ff""")
    PF = opt.get("pf", "0")
    def pfill(key):
        if PF != key: return
        a("v_mov_b32 v6, -1\nv_mov_b32 v7, -1\ns_mov_b64 exec, s[56:57]")
        if key == "Q": lstore("pf", ["global_store_dwordx2 v40, v[6:7], s[40:41]"])
        else: a("global_store_dwordx2 v40, v[6:7], s[40:41]")
        a("s_mov_b64 exec, -1")
    if "P" in EW: a(f"s_mov_b64 exec, s[56:57]\nglobal_load_dwordx2 v[42:43], v40, s[40:41] {EF}\ns_mov_b64 exec, -1")
    pfill("0")
    NF = (1 if PF == "0" else 0) + ("O" in EW) + ("P" in EW)
    zst(); stamp(0)
    masks(8, "v4", "v5")
    a(f"""s_mov_b32 s12, -1
s_mov_b32 s13, 0x00ffffff
v_bfe_u32 v4, v0, 2, 1
v_lshrrev_b32 v5, 5, v0
v_lshl_add_u32 v4, v4, 1, v5
s_lshl_b32 s11, s5, 2
v_add_u32 v4, s11, v4
v_lshlrev_b32 v7, 7, v4
v_and_b32 v4, 3, v0
v_lshl_add_u32 v7, v4, 5, v7
v_bfe_u32 v4, v0, 4, 1
v_lshl_add_u32 v7, v4, 4, v7
s_mov_b32 s14, 0x01000100
s_mov_b32 s15, 0x03020302
s_mov_b32 s42, 0xffff0000
s_mov_b32 s43, {f2u(1.0/448)}
v_mov_b32 v4, 0
v_mov_b32 v6, 0
s_waitcnt vmcnt({4+NF})""")
    stamp(1)
    for i in range(4):
        a(f"v_lshlrev_b32 v{20+2*i}, 16, v{12+i}\nv_and_b32 v{21+2*i}, s42, v{12+i}")
    a("""v_pk_add_f32 v[28:29], v[20:21], v[22:23]
v_pk_add_f32 v[30:31], v[24:25], v[26:27]
v_pk_add_f32 v[28:29], v[28:29], v[30:31]
s_mov_b64 exec, s[12:13]
v_add_f32 v4, v28, v29
s_mov_b64 exec, -1""")
    allred("v_add_f32", "v4", "v5")
    a("v_mul_f32 v4, s43, v4          ; mean")
    for i in range(4): a(f"v_pk_add_f32 v[{20+2*i}:{21+2*i}], v[{20+2*i}:{21+2*i}], v[4:5] {NEG1}")
    a("v_pk_mul_f32 v[28:29], v[20:21], v[20:21]")
    for i in range(1, 4): a(f"v_pk_fma_f32 v[28:29], v[{20+2*i}:{21+2*i}], v[{20+2*i}:{21+2*i}], v[28:29]")
    a("s_mov_b64 exec, s[12:13]\nv_add_f32 v6, v28, v29\ns_mov_b64 exec, -1")
    allred("v_add_f32", "v6", "v5")
    a("v_mul_f32 v6, s43, v6          ; var")
    rbf("v4", "v4"); rbf("v6", "v6")
    a(f"v_add_f32 v6, {f2u(1e-5)}, v6"); rbf("v6", "v6")
    a("v_sqrt_f32 v6, v6"); rbf("v6", "v6")
    a(f"v_rcp_f32 v6, v6\ns_waitcnt vmcnt({3+NF})")
    for i in range(2):
        a(f"v_lshlrev_b32 v{20+2*i}, 16, v{16+i}\nv_and_b32 v{21+2*i}, s42, v{16+i}")
    for i in range(2): a(f"v_pk_add_f32 v[{20+2*i}:{21+2*i}], v[{20+2*i}:{21+2*i}], v[4:5] {NEG1}")
    for i in range(2): a(f"v_cvt_pk_bf16_f32 v{16+i}, v{20+2*i}, v{21+2*i}")
    for i in range(2):
        a(f"v_lshlrev_b32 v{20+2*i}, 16, v{16+i}\nv_and_b32 v{21+2*i}, s42, v{16+i}")
    for i in range(2): a(f"v_pk_mul_f32 v[{20+2*i}:{21+2*i}], v[{20+2*i}:{21+2*i}], v[6:7] op_sel_hi:[1,0]")
    for i in range(2): a(f"v_cvt_pk_bf16_f32 v{16+i}, v{20+2*i}, v{21+2*i}")
    for t in range(2):
        for e in range(2):
            a(f"v_perm_b32 v4, v{16+t}, v{16+t}, s{14+e}")
            for d in range(4): a(f"v_and_b32 v{48+(t*2+e)*4+d}, v4, v{8+d}")
    a("s_mov_b32 s44, 0xf0f0f0f0\ns_mov_b32 s45, 0xf0f0f0f0\ns_mov_b32 s46, 0x00ff00ff\ns_mov_b32 s47, 0xff00ff00")
    for t in range(2):
        a(f"s_waitcnt vmcnt({2+NF-t})")
        if t == 1: stamp(2)
        for e in range(2):
            c = "0" if t == 0 else f"v[{20+4*e}:{23+4*e}]"
            a(f"v_mfma_f32_16x16x32_bf16 v[{20+4*e}:{23+4*e}], v[{48+(t*2+e)*4}:{51+(t*2+e)*4}], v[{32+4*t}:{35+4*t}], {c}")
    for r in range(4): a(f"v_cndmask_b32 v{20+r}, v{20+r}, v{24+r}, s[44:45]")
    a(f"""s_mov_b64 exec, s[46:47]
ds_write_b128 v7, v[20:23] offset:{L_QP}
s_waitcnt lgkmcnt(0)""")
    stamp(3)
    bar("bar1")
    a(f"""s_mov_b64 exec, -1
s_setprio 0
s_lshl_b32 s11, s3, 9
s_bfe_u32 s12, s4, 0x10003
s_lshl_b32 s12, s12, 8
s_add_u32 s11, s11, s12
s_lshr_b32 s12, s4, 4
s_lshl_b32 s12, s12, 7
s_add_u32 s11, s11, s12
s_bfe_u32 s12, s4, 0x10001
s_lshl_b32 s12, s12, 6
s_add_u32 s11, s11, s12
s_and_b32 s12, s4, 1
s_lshl_b32 s12, s12, 5
s_add_u32 s11, s11, s12
s_bfe_u32 s12, s4, 0x10002
s_lshl_b32 s12, s12, 2
s_add_u32 s11, s11, s12
v_lshrrev_b32 v2, 4, v0
v_lshlrev_b32 v2, 3, v2
v_bfe_u32 v1, v0, 3, 1
v_add3_u32 v2, v2, v1, s11
v_mul_u32_u24 v2, 896, v2
v_and_b32 v3, 7, v0
v_lshl_add_u32 v2, v3, 4, v2
s_lshl_b32 s12, s5, 7
v_add_u32 v2, s12, v2
v_lshrrev_b32 v1, 3, v0
v_lshlrev_b32 v1, 3, v1
v_mov_b32 v5, 0""")
    bar("bar2")
    a("s_waitcnt vmcnt(0)")
    bar("barK"); bar("barK2")
    pfill("K")
    nt = [0]
    def wold(key):
        for _ in range(WO.get(key, 0)):
            t = nt[0]; nt[0] += 1
            a(f"global_load_dwordx4 v[{32+4*t}:{35+4*t}], v2, s[24:25] offset:{1792*t} nt")
    bar("barQ")
    a(f"ds_read_b32 v3, v5 offset:{L_FL}")
    a("s_waitcnt lgkmcnt(0)\nv_readfirstlane_b32 s9, v3")
    pfill("Q")
    wold("Q")
    bar("barM"); wold("M")
    bar("barW"); wold("W")
    a(f"s_waitcnt vmcnt({nt[0]})")
    bar("barO"); wold("O")
    assert nt[0] == 2
    stamp(4)
    if diag and KEEP is None:
        a("s_waitcnt vmcnt(0)"); stamp(5)
    bar("barS")
    a(f"ds_read_b64 v[12:13], v1 offset:{L_OS}\ns_waitcnt lgkmcnt(0)")
    for t in range(2):
        for d in range(4): a(f"v_and_b32 v{48+4*t+d}, v{12+t}, v{8+d}")
        if t == 0: a("s_waitcnt vmcnt(0)")
        c = "0" if t == 0 else "v[20:23]"
        a(f"v_mfma_f32_16x16x32_bf16 v[20:23], v[{48+4*t}:{51+4*t}], v[{32+4*t}:{35+4*t}], {c}")
    a(f"""v_permlane32_swap_b32 v20, v22
v_permlane32_swap_b32 v21, v23
v_add_f32_dpp v20, v22, v20 row_ror:8 {DPP}
v_add_f32_dpp v21, v23, v21 row_ror:8 {DPP}
s_mov_b64 exec, s[56:57]""")
    lstore("p", ["global_store_dwordx2 v40, v[20:21], s[40:41]"])
    stamp(6)
    endp()

    def pset(sel=False):
        for i in range(8):
            if sel: a(f"s_mov_b64 exec, s[{18+2*i}:{19+2*i}]")
            a(f"global_load_dwordx4 v[{64+4*i}:{67+4*i}], v12, s[40:41] offset:{1024*i-4096} sc1")
        if sel: a("s_mov_b64 exec, -1")
    def pchk():
        for i in range(8): a(f"v_xor_b32 v{16+i}, s15, v{65+4*i}")
        for i in range(8): a(f"v_bitop3_b32 v{16+i}, v{67+4*i}, s15, v{16+i} bitop3:0xbe")
        for i in range(8): a(f"v_cmp_lt_u32 s[{18+2*i}:{19+2*i}], 15, v{16+i}")
        a("v_or3_b32 v4, v16, v17, v18\nv_or3_b32 v5, v19, v20, v21\nv_or3_b32 v4, v4, v22, v23\nv_or_b32 v4, v4, v5\nv_cmp_lt_u32 vcc, 15, v4")
    def gpub():
        a(f"v_xor_b32 v2, {WS_G ^ WS_A}, v3\ns_mov_b64 exec, s[50:51]\nglobal_store_dwordx4 v2, v[8:11], s[40:41] sc1\ns_mov_b64 exec, -1")
    a("L_H2:")
    bar("bar1")
    a(f"""ds_read_b128 v[16:19], v1 offset:{L_QP}
ds_read_b128 v[20:23], v1 offset:{L_QP+1024}
ds_read_b128 v[24:27], v1 offset:{L_QP+2048}
ds_read_b128 v[28:31], v1 offset:{L_QP+3072}
s_waitcnt lgkmcnt(0)
v_pk_add_f32 v[16:17], v[16:17], v[20:21]
v_pk_add_f32 v[18:19], v[18:19], v[22:23]
v_pk_add_f32 v[24:25], v[24:25], v[28:29]
v_pk_add_f32 v[26:27], v[26:27], v[30:31]
v_pk_add_f32 v[16:17], v[16:17], v[24:25]
v_pk_add_f32 v[18:19], v[18:19], v[26:27]
v_permlane32_swap_b32 v16, v18
v_permlane32_swap_b32 v17, v19
v_pk_add_f32 v[16:17], v[16:17], v[18:19]
v_add_f32_dpp v16, v16, v16 row_ror:8 {DPP}
v_add_f32_dpp v17, v17, v17 row_ror:8 {DPP}
v_mov_b32 v18, v16
v_mov_b32 v19, v17
v_permlane16_swap_b32 v18, v16
v_permlane16_swap_b32 v19, v17
v_add_f32 v8, v16, v18
v_add_f32 v10, v17, v19
s_mov_b64 exec, s[50:51]
global_store_dwordx4 v3, v[8:11], s[40:41]
s_mov_b64 exec, -1""")
    stamp(2)
    bar("bar2"); bar("barK")
    sleep(PD0)
    pset()
    a(f"""; the fills of this workgroup have landed: say so in the ML words (tag ^ 1: no values yet)
s_xor_b32 s12, s14, 1
v_mov_b32 v5, s12
v_mov_b32 v7, s12
v_add_u32 v2, {WS_ML}, v1
s_mov_b64 exec, 3
global_store_dwordx4 v2, v[4:7], s[54:55]
s_mov_b64 exec, -1""")
    bar("barK2")
    a(f"s_mov_b32 s10, {KLOC}\nL_H_poll:\ns_waitcnt vmcnt(0)")
    pchk()
    a("s_cbranch_vccz L_H_got")
    sleep(PD1)
    pset(True)
    a(f"""s_sub_u32 s10, s10, 1
s_cbranch_scc0 L_H_poll
s_branch L_H_far
L_H_got:""")
    cnt(13)
    for i in range(4):
        a(f"v_add_f32 v16, v{64+4*i}, v{80+4*i}\nv_add_f32 v17, v{66+4*i}, v{82+4*i}\nv_cvt_pk_bf16_f32 v{20+i}, v16, v17")
    a(f"""v_and_b32 v4, 7, v4
v_cmp_ne_u32 vcc, 0, v4
v_lshlrev_b32 v2, 2, v0
s_cmp_eq_u64 vcc, 0
s_cselect_b32 s9, 1, 0
ds_write2st64_b32 v2, v20, v21 offset0:{L_Q//256} offset1:{L_Q//256+1}
ds_write2st64_b32 v2, v22, v23 offset0:{L_Q//256+2} offset1:{L_Q//256+3}
v_mov_b32 v4, s9
v_mov_b32 v5, s14
v_mov_b32 v6, s13
v_mov_b32 v2, 0
ds_write_b96 v2, v[4:6] offset:{L_FL}
s_cbranch_scc0 L_H_span
L_H_go:
s_waitcnt lgkmcnt(0)""")
    stamp(3)
    bar("barQ")
    a(f"""s_mov_b32 s42, {C_SC}
v_lshrrev_b32 v2, 5, v0
v_lshlrev_b32 v9, 4, v2
v_add_u32 v9, {WS_ML}, v9
v_mov_b32 v53, s14
v_mov_b32 v55, s14
s_min_u32 s43, s4, 27
v_and_b32 v3, 7, v0
v_lshl_add_u32 v5, v3, 1, v2
s_lshl_b32 s12, s43, 4
v_add_u32 v5, s12, v5
v_lshlrev_b32 v5, 1, v5
global_load_ushort v31, v5, s[16:17]
v_lshrrev_b32 v8, 2, v0
s_lshl_b32 s11, s3, 5
v_add_u32 v8, s11, v8
v_lshlrev_b32 v12, 11, v8
v_and_b32 v6, 3, v0
v_lshl_add_u32 v12, v6, 4, v12
s_lshl_b32 s12, s43, 6
s_add_u32 s12, s12, {WS_P}
v_add_u32 v24, s12, v12
v_add_u32 v25, 0x8000, v24
s_lshl_b32 s12, s4, 6
s_add_u32 s12, s12, {WS_O}
v_add_u32 v12, s12, v12
v_add_u32 v13, 0x8000, v12
v_lshlrev_b32 v8, 7, v8
s_bfe_u32 s12, s4, 0x10003       ; head
s_lshl_b32 s12, s12, 4
s_add_u32 s12, s12, {WS_ML}
v_add_u32 v8, s12, v8
v_lshrrev_b32 v4, 4, v0
v_and_b32 v10, 1, v4
v_lshlrev_b32 v10, 3, v10
v_lshl_add_u32 v10, v2, 2, v10
v_lshl_add_u32 v10, v6, 4, v10
s_lshr_b32 s12, s43, 3
s_lshl_b32 s12, s12, 14
s_and_b32 s11, s43, 7
s_lshl_b32 s11, s11, 10
s_add_u32 s12, s12, s11
s_add_u32 s12, s12, {WS_I}
v_bfe_u32 v26, v0, 2, 2
v_lshlrev_b32 v26, 16, v26
v_lshl_add_u32 v6, v6, 2, v4
v_lshl_add_u32 v26, v6, 3, v26
s_lshl_b32 s11, s3, 7
s_add_u32 s11, s11, s12
v_add_u32 v26, s11, v26
v_add_u32 v27, {4*65536}, v26    ; destinations 4..7
s_lshl_b32 s11, s3, 16
s_add_u32 s12, s12, s11
v_add_u32 v28, s12, v1""")
    if SIDE == "vote":
        a("; the group's side: majority of the 32 votes (every member sees the same tags)\nv_bfe_u32 v16, v65, 3, 1")
        for i in range(1, 8): a(f"v_bfe_u32 v17, v{65+4*i}, 3, 1\nv_add_u32 v16, v16, v17")
        a(f"""v_readlane_b32 s44, v16, 0
v_readlane_b32 s45, v16, 16
v_readlane_b32 s46, v16, 32
v_readlane_b32 s47, v16, 48
s_add_u32 s44, s44, s45
s_add_u32 s46, s46, s47
s_add_u32 s44, s44, s46
s_sub_u32 s45, 32, s44
s_bitcmp1_b32 s7, 2
s_cselect_b32 s44, s45, s44      ; votes for "address bit 13 = 1 lies on the side of XCDs 0..3"
s_cselect_b32 s45, 0x2000, 0
s_or_b32 s44, s44, s45           ; | (xcc >> 2) << 13
v_bfe_u32 v30, v0, 2, 2
v_lshlrev_b32 v30, 7, v30
s_lshl_b32 s12, s3, 10
s_add_u32 s12, s12, {WS_S}
v_add_u32 v30, s12, v30
s_cmp_lg_u32 s4, {opt.get("sdm", 0)}
s_cbranch_scc1 L_H_sd
v_mov_b32 v16, s44
v_mov_b32 v17, s14
s_lshl_b32 s12, s3, 7
s_add_u32 s12, s12, {WS_S}
v_lshl_add_u32 v18, v0, 10, s12
s_mov_b64 exec, 0xff
global_store_dwordx2 v18, v[16:17], s[40:41] sc1
s_mov_b64 exec, -1
L_H_sd:""")
        if diag: a("s_lshr_b32 s66, s44, 13\ns_add_u32 s66, s66, 1\ns_lshr_b32 s12, s7, 3\ns_lshl_b32 s12, s12, 4\ns_add_u32 s66, s66, s12")
        a("v_xor_b32 v14, 0x2000, v28")
    elif SIDE is not None:
        a(f"v_add_u32 v{26 + (SIDE ^ 1)}, 0x2000, v{26 + (SIDE ^ 1)}\ns_lshr_b32 s12, s3, 2\ns_xor_b32 s12, s12, {SIDE}\ns_lshl_b32 s12, s12, 13\nv_add_u32 v28, s12, v28")
    else:
        a("s_lshl_b32 s12, s43, 13\ns_and_b32 s12, s12, 0x2000\nv_add_u32 v26, s12, v26\nv_add_u32 v27, s12, v27\nv_add_u32 v28, s12, v28")
    a(f"""s_lshl_b32 s12, s3, 5
s_add_u32 s12, s12, s43
s_lshl_b32 s12, s12, 6
s_add_u32 s12, s12, {WS_H}
v_lshl_add_u32 v29, v0, 3, s12""")
    bar("barM")
    a(f"""ds_read_b128 v[48:51], v1 offset:{L_SC}
s_waitcnt lgkmcnt(0)
v_max3_f32 v52, v48, v49, v50
v_max_f32 v52, v52, v51""")
    red_row("v_max_f32", "v52"); red_x16("v_max_f32", "v52", "v5")
    for r in range(4): a(f"v_sub_f32 v{48+r}, v{48+r}, v52")
    for r in range(4): a(f"v_mul_f32 v{48+r}, s42, v{48+r}")
    for r in range(4): a(f"v_exp_f32 v{48+r}, v{48+r}")
    a("v_add_f32 v48, v48, v49\nv_add_f32 v50, v50, v51\nv_add_f32 v54, v48, v50")
    red_row("v_add_f32", "v54"); red_x16("v_add_f32", "v54", "v5")
    a("s_mov_b32 exec_lo, 1\ns_mov_b32 exec_hi, 1")
    lstore("ml", ["global_store_dwordx4 v9, v[52:55], s[54:55]"])
    a("s_mov_b64 exec, -1")
    stamp(4)
    def mlld():
        for i in range(2): a(f"global_load_dwordx4 v[{32+4*i}:{35+4*i}], v8, s[40:41] offset:{2048*i} sc1")
    def old(sel):
        for i in range(2):
            if sel: a(f"s_mov_b64 exec, s[{18+2*i}:{19+2*i}]")
            a(f"global_load_dwordx4 v[{48+4*i}:{51+4*i}], v{12+i}, s[40:41] sc1")
        if sel: a("s_mov_b64 exec, -1")
    mlld()
    def sdld(): a("global_load_dwordx2 v[40:41], v30, s[40:41] sc1\nglobal_load_dwordx2 v[42:43], v30, s[40:41] offset:512 sc1")
    SDP = opt.get("sdp", "T")
    if SIDE == "vote" and SDP == "W": sdld()
    if opt.get("hpre", False):
        a("s_cmp_lt_u32 s4, 28\ns_cselect_b32 s12, s9, 0\ns_cmp_eq_u32 s12, 0\ns_cbranch_scc1 L_H_np\nv_xor_b32 v17, 1, v53\ns_mov_b64 exec, 0xff\nglobal_store_dwordx2 v29, v[16:17], s[40:41]\ns_mov_b64 exec, -1\nL_H_np:")
    WARM = opt.get("warm", "H"); WF = opt.get("wf", "sc1")
    if "O" in WARM: a(f"global_load_dwordx4 v[48:51], v12, s[40:41] {WF}\nglobal_load_dwordx4 v[52:55], v13, s[40:41] {WF}")
    if "P" in WARM: a(f"global_load_dwordx4 v[64:67], v24, s[40:41] {WF}\nglobal_load_dwordx4 v[68:71], v25, s[40:41] {WF}")
    if "I" in WARM:
        a(f"global_load_dwordx4 v[96:99], v28, s[40:41] {WF}")
        if SIDE == "vote": a(f"global_load_dwordx4 v[100:103], v14, s[40:41] {WF}")
    bar("barW"); bar("barO")
    stamp(5)
    a(f"s_mov_b32 s10, {SPIN}\ns_branch L_T_chk\nL_T_poll:\ns_sub_u32 s10, s10, 1\ns_cbranch_scc1 L_T_got")
    mlld()
    a("L_T_chk:\ns_waitcnt vmcnt(0)")
    xtag("v5", (33, 35, 37, 39))
    a("""v_cmp_lt_u32 vcc, 1, v5
s_cbranch_vccnz L_T_poll
L_T_got:                         ; every fill of the group has landed: the O slots are trusted from here on (a member's P slot once its O slot is there)
s_mov_b64 s[18:19], -1
s_mov_b64 s[20:21], -1
s_mov_b32 s12, 0
s_mov_b64 s[26:27], -1""")
    if SIDE == "vote" and SDP == "T": sdld()
    a("L_O_poll:")
    old(True)
    a("""s_cmp_eq_u32 s12, 1
s_cbranch_scc1 L_O_chk
v_cmp_ne_u32 vcc, 0, v5
s_cbranch_vccnz L_ML_again
v_max_f32 v20, v32, v36""")
    red_hi("v_max_f32", "v20", "v5")
    a("""v_sub_f32 v32, v32, v20
v_sub_f32 v36, v36, v20
v_mul_f32 v32, s42, v32
v_mul_f32 v36, s42, v36
v_exp_f32 v32, v32
v_exp_f32 v36, v36
v_mul_f32 v21, v32, v34
v_fmac_f32 v21, v36, v38""")
    red_hi("v_add_f32", "v21", "v5")
    a("v_rcp_f32 v21, v21\nv_mul_f32 v32, v32, v21\nv_mul_f32 v36, v36, v21")
    stamp(6)
    a("""s_mov_b32 s12, 1
s_cmp_eq_u64 s[26:27], 0
s_cbranch_scc1 L_O_got
s_branch L_O_chk
L_ML_again:""")
    mlld()
    a("s_waitcnt vmcnt(0)")
    xtag("v5", (33, 35, 37, 39))
    a("""L_O_chk:
s_waitcnt vmcnt(0)
v_max3_u32 v16, v48, v49, v50
v_max3_u32 v17, v52, v53, v54
v_max_u32 v16, v16, v51
v_max_u32 v17, v17, v55
v_cmp_eq_u32 s[18:19], -1, v16
v_cmp_eq_u32 s[20:21], -1, v17
s_or_b64 s[26:27], s[18:19], s[20:21]
s_cselect_b32 s11, 0, s12
s_cmp_eq_u32 s11, 1
s_cbranch_scc1 L_O_got
s_sub_u32 s10, s10, 1
s_cbranch_scc0 L_O_poll
L_O_got:""")
    cnt(12)
    stamp(7)
    a("""v_pk_mul_f32 v[48:49], v[48:49], v[32:33] op_sel_hi:[1,0]
v_pk_mul_f32 v[50:51], v[50:51], v[32:33] op_sel_hi:[1,0]
v_pk_fma_f32 v[48:49], v[52:53], v[36:37], v[48:49] op_sel_hi:[1,0,1]
v_pk_fma_f32 v[50:51], v[54:55], v[36:37], v[50:51] op_sel_hi:[1,0,1]""")
    tred(48, 48)
    a(f"""v_cvt_pk_bf16_f32 v48, v48, v48
ds_write_b32 v10, v48 offset:{L_OS}""")
    if SIDE == "vote" and SDP == "S": sdld()
    a("s_waitcnt lgkmcnt(0)")
    bar("barS")
    a("s_cmp_ge_u32 s4, 28\ns_cbranch_scc1 L_fin")
    a("v_lshlrev_b32 v31, 16, v31\nv_mov_b32 v49, s14")
    if SIDE == "vote":
        a(f"s_mov_b32 s10, {SPIN}\ns_branch L_SD_chk\nL_SD_poll:\ns_sub_u32 s10, s10, 1\ns_cbranch_scc1 L_SD_got")
        sdld()
        a("L_SD_chk:\ns_waitcnt vmcnt(0)")
        xtag("v5", (41, 43))
        a(f"""v_cmp_ne_u32 vcc, 0, v5
s_cbranch_vccnz L_SD_poll
L_SD_got:
v_add_u32 v5, v40, v42
v_and_b32 v5, 0xff, v5
v_add_u32_dpp v5, v5, v5 row_ror:8 {DPP}
v_add_u32_dpp v5, v5, v5 row_ror:4 {DPP}
s_and_b32 s12, s3, 3
s_lshl_b32 s12, s12, 2
v_cmp_lt_u32 vcc, 0x80, v5
v_cndmask_b32 v5, 0, -1, vcc
v_xor_b32 v40, v40, v5
v_xor_b32 v42, v42, v5
v_and_b32 v40, 0x2000, v40
v_and_b32 v42, 0x2000, v42
v_add_u32 v26, v26, v40
v_add_u32 v27, v27, v42
v_readlane_b32 s44, v40, s12
v_readlane_b32 s45, v42, s12
s_cmp_lt_u32 s3, 4
s_cselect_b32 s44, s44, s45
v_add_u32 v28, s44, v28""")
        if "J" in WARM: a(f"global_load_dwordx4 v[96:99], v28, s[40:41] {WF}")
    sleep(opt.get("pdl", 0))
    def p_issue(k): a(f"global_load_dwordx4 v[{64+8*k}:{67+8*k}], v24, s[40:41] sc1\nglobal_load_dwordx4 v[{68+8*k}:{71+8*k}], v25, s[40:41] sc1")
    def p_check(k):
        r = 64 + 8 * k
        a(f"v_max3_u32 v5, v{r}, v{r+1}, v{r+2}\nv_max3_u32 v6, v{r+3}, v{r+4}, v{r+5}\nv_max3_u32 v5, v5, v{r+6}, v{r+7}\nv_max_u32 v5, v5, v6\nv_cmp_eq_u32 vcc, -1, v5")
    def p_fin(k):
        r = 64 + 8 * k
        a(f"v_pk_add_f32 v[52:53], v[{r}:{r+1}], v[{r+4}:{r+5}]\nv_pk_add_f32 v[54:55], v[{r+2}:{r+3}], v[{r+6}:{r+7}]")
    ppoll("RS", NP, 2, p_issue, p_check, p_fin, opt.get("ppace", 0))
    cnt(14)
    stamp(8)
    tred(52, 48)
    a("global_store_dwordx2 v26, v[48:49], s[40:41] sc1\nglobal_store_dwordx2 v27, v[48:49], s[40:41] sc1")
    stamp(9)
    def i_issue(k): a(f"global_load_dwordx4 v[{96+4*k}:{99+4*k}], v28, s[40:41] sc1")
    def i_check(k):
        xtag("v5", (97 + 4 * k, 99 + 4 * k)); a("v_cmp_ne_u32 vcc, 0, v5")
    def i_fin(k): a(f"v_mov_b32 v52, v{96+4*k}\nv_mov_b32 v54, v{98+4*k}")
    ppoll("I", NI, 1, i_issue, i_check, i_fin, opt.get("ipace", 0))
    cnt(11)
    stamp(10)
    a(f"""v_permlane32_swap_b32 v52, v54
v_add_f32 v52, v52, v54
v_add_f32_dpp v52, v52, v52 row_ror:8 {DPP}
v_mov_b32 v54, v52
v_permlane16_swap_b32 v54, v52
v_add_f32 v52, v52, v54""")
    rbf("v52", "v52")
    a(f"""v_add_f32 v52, v52, v31
v_mov_b32 v54, v52
v_permlane32_swap_b32 v54, v52
v_cvt_pk_bf16_f32 v48, v54, v52
s_mov_b64 exec, 0xff""")
    lstore("h", ["global_store_dwordx2 v29, v[48:49], s[40:41]"])
    bar("barR")
    endp()

    a("L_S:")
    masks(8, "v4", "v5")
    a(f"""v_bfe_u32 v3, v0, 3, 1
v_lshl_add_u32 v6, v3, 9, v6
v_lshrrev_b32 v4, 4, v0
s_lshl_b32 s12, s5, 2
v_add_u32 v7, s12, v4
v_lshlrev_b32 v7, 4, v7
v_lshl_add_u32 v7, v3, 9, v7
v_lshlrev_b32 v4, 3, v4
v_and_b32 v5, 7, v0
v_add_u32 v4, v4, v5
v_lshlrev_b32 v4, 4, v4
v_lshl_add_u32 v3, v3, 9, v4
s_mov_b32 s42, {C_SC}
s_mov_b32 s44, 0x01010101
s_mov_b32 s45, 0x01010101
v_mov_b32 v5, 0""")
    bar("bar1"); bar("bar2")
    for i in range(KH, 8): kld(i)
    VX = opt.get("vx", 3)
    if VX:
        a("s_cmp_eq_u32 s5, 7\ns_cbranch_scc1 L_S_k")
        for i in range(VX): vld(i)
        a("L_S_k:")
    bar("barK"); bar("barK2")
    a("s_cmp_eq_u32 s5, 7\ns_cbranch_scc1 L_S_q")
    for i in range(VX, VP): vld(i)
    a("L_S_q:")
    stamp(1)
    bar("barQ")
    stamp(2)
    a(f"""ds_read_b128 v[12:15], v6 offset:{L_Q}
ds_read_b128 v[16:19], v6 offset:{L_Q+256}
ds_read_b96 v[20:22], v5 offset:{L_FL}
s_cmp_lg_u32 s5, 7
s_cbranch_scc1 L_S_qk""")
    for i in range(FQ): vld(i)
    a(f"""s_waitcnt vmcnt({FQ})
L_S_qk:
s_waitcnt vmcnt({VP}) lgkmcnt(0)""")
    stamp(3)
    for hf in range(2):
        for t in range(4):
            c = "0" if hf == 0 else f"v[{96+4*t}:{99+4*t}]"
            a(f"v_mfma_f32_16x16x32_bf16 v[{96+4*t}:{99+4*t}], v[{32+8*t+4*hf}:{35+8*t+4*hf}], v[{12+4*hf}:{15+4*hf}], {c}")
    a("v_readfirstlane_b32 s9, v20\nv_readfirstlane_b32 s14, v21\nv_readfirstlane_b32 s13, v22")
    for t in range(4):
        for r in range(4):
            q = f"quad_perm:[{r},{r},{r},{r}]"
            if r == 0: a(f"v_mov_b32_dpp v{28+t}, v{96+4*t} {q} {DPP}")
            else: a(f"v_add_f32_dpp v{28+t}, v{96+4*t+r}, v{28+t} {q} {DPP}")
    for t in range(4): a(f"v_cvt_pk_bf16_f32 v{28+t}, v{28+t}, v{28+t}")
    for t in range(4): a(f"v_lshlrev_b32 v{28+t}, 16, v{28+t}")
    a(f"""s_mov_b64 exec, s[44:45]
ds_write_b128 v7, v[28:31] offset:{L_SC}
s_mov_b64 exec, -1
s_waitcnt lgkmcnt(0)""")
    bar("barM")
    a(f"""ds_read_b128 v[12:15], v3 offset:{L_SC}
s_waitcnt lgkmcnt(0)
v_max3_f32 v4, v12, v13, v14
v_max_f32 v4, v4, v15""")
    for m in ("quad_perm:[1,0,3,2]", "quad_perm:[2,3,0,1]", "row_half_mirror"):
        a(f"v_max_f32_dpp v4, v4, v4 {m} {DPP}")
    red_x16("v_max_f32", "v4", "v5"); red_x32("v_max_f32", "v4", "v5")
    for t in range(4): a(f"v_sub_f32 v{28+t}, v{28+t}, v4")
    for t in range(4): a(f"v_mul_f32 v{28+t}, s42, v{28+t}")
    for t in range(4): a(f"v_exp_f32 v{28+t}, v{28+t}")
    for t in range(4): a(f"v_cvt_pk_bf16_f32 v{28+t}, v{28+t}, v{28+t}")
    for t in range(4):
        for d in range(4): a(f"v_and_b32 v{96+4*t+d}, v{28+t}, v{8+d}")
    a("v_lshlrev_b32 v1, 4, v0")
    stamp(4)
    bar("barW")
    a("s_cmp_eq_u32 s5, 7\ns_cbranch_scc1 L_F")
    for i in range(VP, 8): vld(i)
    def pv(first_zero):
        for i in range(8):
            t, hf = i // 2, i % 2
            a(f"s_waitcnt vmcnt({7-i})")
            if i == 7: stamp(6)
            c = "0" if (t == 0 and first_zero) else f"v[{20+4*hf}:{23+4*hf}]"
            a(f"v_mfma_f32_16x16x32_bf16 v[{20+4*hf}:{23+4*hf}], v[{96+4*t}:{99+4*t}], v[{64+4*i}:{67+4*i}], {c}")
    pv(True)
    a(f"""s_lshl_b32 s12, s5, 11
v_add_u32 v2, s12, v1
ds_write_b128 v2, v[20:23] offset:{L_OP}
ds_write_b128 v2, v[24:27] offset:{L_OP+1024}
s_waitcnt lgkmcnt(0)""")
    stamp(5)
    bar("barO")
    a(f"""s_cmp_ge_u32 s4, 28
s_cbranch_scc1 L_fin
s_cmp_ge_u32 s5, 4
s_cbranch_scc1 L_fin""")
    bar("barS")
    a(f"""; ---- MLP waves: lane L = s*64 + l owns f = 7L .. 7L+6 ----
s_lshl_b32 s12, s5, 6
v_add_u32 v3, s12, v0
v_mul_u32_u24 v4, 14, v3
v_and_b32 v5, 1, v0
v_lshlrev_b32 v6, 1, v5
v_sub_u32 v4, v4, v6
global_load_dwordx4 v[112:115], v4, s[28:29]
global_load_dwordx4 v[116:119], v4, s[30:31]
global_load_dwordx4 v[120:123], v4, s[32:33]
v_mov_b32 v6, 0
global_load_ushort v125, v6, s[34:35]
global_load_ushort v126, v6, s[36:37]
s_mov_b32 s43, 0xffff0000
v_lshlrev_b32 v5, 4, v5
v_mov_b32 v88, {f2u(GK0)}
v_mov_b32 v89, {f2u(GK1)}
v_mov_b32 v90, 1.0
s_mul_i32 s11, s3, 28
s_add_u32 s11, s11, s4
s_lshl_b32 s11, s11, 1           ; d0 = g*56 + mbr*2
s_lshl_b32 s12, s3, 11
s_add_u32 s12, s12, {WS_H}
v_add_u32 v3, s12, v1
s_lshl_b32 s15, s11, 2
s_add_u32 s12, s12, s15
v_mov_b32 v4, s12
s_mov_b32 s48, {f2u(1.0/448)}
s_mov_b32 s49, {f2u(1e-5)}
s_mov_b32 s50, -1
s_mov_b32 s51, 0xffff""")
    HB = [96, 8, 24]
    def h_issue(k):
        r = HB[k]
        a(f"""global_load_dwordx2 v[{r+8}:{r+9}], v4, s[40:41] sc1
global_load_dwordx4 v[{r}:{r+3}], v3, s[40:41] sc1
s_mov_b64 exec, s[50:51]
global_load_dwordx4 v[{r+4}:{r+7}], v3, s[40:41] offset:1024 sc1
s_mov_b64 exec, -1""")
    def h_check(k):
        r = HB[k]
        xtag("v5", (r + 1, r + 3, r + 5, r + 7, r + 9)); a("v_cmp_ne_u32 vcc, 0, v5")
    def h_fin(k):
        r = HB[k]
        a(f"""v_and_b32 v95, s43, v{r+8}
v_lshlrev_b32 v94, 16, v{r+8}
v_and_b32 v33, s43, v{r}
v_lshlrev_b32 v32, 16, v{r}
v_and_b32 v35, s43, v{r+2}
v_lshlrev_b32 v34, 16, v{r+2}
v_and_b32 v41, s43, v{r+4}
v_lshlrev_b32 v40, 16, v{r+4}
v_and_b32 v47, s43, v{r+6}
v_lshlrev_b32 v46, 16, v{r+6}""")
    for k in range(NH): a(f"v_mov_b32 v{HB[k]+5}, s14\nv_mov_b32 v{HB[k]+7}, s14")
    if opt.get("warm", True): h_issue(0)
    a("s_waitcnt vmcnt(0)")
    for k in range(3):
        r = 112 + 4 * k; o = 64 + 8 * k
        for j in range(3): a(f"v_alignbit_b32 v{r+j}, v{r+j+1}, v{r+j}, v5")
        a(f"v_lshrrev_b32 v{r+3}, v5, v{r+3}")
        for j in range(3): a(f"v_lshlrev_b32 v{o+2*j}, 16, v{r+j}\nv_and_b32 v{o+2*j+1}, s43, v{r+j}")
        a(f"v_lshlrev_b32 v{o+6}, 16, v{r+3}")
    a(f"""v_lshlrev_b32 v125, 16, v125
v_lshrrev_b32 v6, 5, v0
v_lshlrev_b32 v6, 4, v6
s_lshl_b32 s12, s5, 2
v_add_u32 v6, s12, v6
s_lshl_b32 s12, s11, 1
v_lshl_add_u32 v7, v0, 1, s12
s_mov_b32 s46, 0x10000
s_mov_b32 s47, 0x10000""")
    bar("barR")
    stamp(7)
    ppoll("A", NH, 3, h_issue, h_check, h_fin, opt.get("hpace", 0))
    cnt(14)
    stamp(8)
    a(f"""v_pk_add_f32 v[32:33], v[32:33], v[94:95] {NEG1}
v_pk_add_f32 v[34:35], v[34:35], v[94:95] {NEG1}
v_pk_add_f32 v[40:41], v[40:41], v[94:95] {NEG1}
v_pk_add_f32 v[46:47], v[46:47], v[94:95] {NEG1}
v_pk_mul_f32 v[42:43], v[32:33], v[32:33]
v_pk_add_f32 v[44:45], v[32:33], v[34:35]
v_pk_fma_f32 v[42:43], v[34:35], v[34:35], v[42:43]
s_mov_b64 exec, s[50:51]
v_pk_add_f32 v[44:45], v[44:45], v[40:41]
v_pk_fma_f32 v[42:43], v[40:41], v[40:41], v[42:43]
v_pk_add_f32 v[44:45], v[44:45], v[46:47]
v_pk_fma_f32 v[42:43], v[46:47], v[46:47], v[42:43]
s_mov_b64 exec, -1
v_add_f32 v44, v44, v45
v_add_f32 v42, v42, v43
v_sub_f32 v47, v95, v94""")
    for m in ("quad_perm:[1,0,3,2]", "quad_perm:[2,3,0,1]", "row_half_mirror", "row_mirror"):
        a(f"v_add_f32_dpp v44, v44, v44 {m} {DPP}\nv_add_f32_dpp v42, v42, v42 {m} {DPP}")
    for sw in ("v_permlane16_swap_b32", "v_permlane32_swap_b32"):
        a(f"v_mov_b32 v45, v44\nv_mov_b32 v43, v42\n{sw} v45, v44\n{sw} v43, v42\nv_add_f32 v44, v44, v45\nv_add_f32 v42, v42, v43")
    a("""v_mul_f32 v44, s48, v44          ; mean - c
v_mul_f32 v42, s48, v42
v_fma_f32 v42, -v44, v44, v42    ; var
v_max_f32 v42, 0, v42
v_add_f32 v43, s49, v42
v_fma_f32 v42, v43, s49, v42
v_rsq_f32 v42, v42
v_sub_f32 v47, v47, v44
v_sub_f32 v46, 0, v44
v_pk_mul_f32 v[46:47], v[46:47], v[42:43] op_sel_hi:[1,0]""")
    stamp(10)
    def bc(base, i):
        r = base + (i & ~1)
        return f"v[{r}:{r+1}]", i & 1
    for i in range(7):
        w, s1 = bc(64, i); b, s2 = bc(72, i)
        a(f"v_pk_fma_f32 v[{32+2*i}:{33+2*i}], v[46:47], {w}, {b} op_sel:[0,{s1},{s2}] op_sel_hi:[1,{s1},{s2}]")
    for i in range(7): a(f"v_pk_mul_f32 v[{48+2*i}:{49+2*i}], v[{32+2*i}:{33+2*i}], v[{32+2*i}:{33+2*i}]")
    for i in range(7): a(f"v_pk_fma_f32 v[{48+2*i}:{49+2*i}], v[{48+2*i}:{49+2*i}], v[88:89], v[88:89] op_sel:[0,1,0] op_sel_hi:[1,1,0]")
    for i in range(7): a(f"v_pk_mul_f32 v[{48+2*i}:{49+2*i}], v[{48+2*i}:{49+2*i}], v[{32+2*i}:{33+2*i}]")
    for i in range(14): a(f"v_exp_f32 v{48+i}, v{48+i}")
    for i in range(7):
        w, s1 = bc(80, i)
        a(f"v_pk_mul_f32 v[{32+2*i}:{33+2*i}], v[{32+2*i}:{33+2*i}], {w} op_sel:[0,{s1}] op_sel_hi:[1,{s1}]")
    for i in range(7): a(f"v_pk_add_f32 v[{48+2*i}:{49+2*i}], v[{48+2*i}:{49+2*i}], v[90:91] op_sel_hi:[1,0]")
    for i in range(14): a(f"v_rcp_f32 v{48+i}, v{48+i}")
    a("v_pk_mul_f32 v[20:21], v[32:33], v[48:49]")
    for i in range(1, 7): a(f"v_pk_fma_f32 v[20:21], v[{32+2*i}:{33+2*i}], v[{48+2*i}:{49+2*i}], v[20:21]")
    stamp(11)
    a("v_permlane32_swap_b32 v20, v21\nv_add_f32 v20, v20, v21")
    red_row("v_add_f32", "v20")
    a(f"""v_add_f32_dpp v20, v20, v20 row_bcast:15 row_mask:0xa bank_mask:0xf
s_mov_b64 exec, s[46:47]
ds_write_b32 v6, v20 offset:{L_YS}
s_mov_b64 exec, 2
v_mov_b32 v94, v95
s_mov_b64 exec, 3
s_waitcnt lgkmcnt(0)""")
    bar("barY")
    a(f"""s_cmp_lg_u32 s5, 0
s_cbranch_scc1 L_fin
ds_read_b128 v[20:23], v1 offset:{L_YS}
s_waitcnt lgkmcnt(0)
v_pk_add_f32 v[20:21], v[20:21], v[22:23]
v_add_f32 v20, v20, v21""")
    rbf("v20", "v20")
    a("v_add_f32 v20, v20, v125"); rbf("v20", "v20")
    a("v_add_f32 v20, v20, v94\nv_cvt_pk_bf16_f32 v20, v20, v20\nglobal_store_short v7, v20, s[36:37]")
    stamp(12)
    a(f"""s_cmp_lg_u32 s2, 0
s_cbranch_scc1 L_fin
s_add_u32 s13, s13, 16
v_mov_b32 v4, s13
v_mov_b32 v5, 0
s_mov_b64 exec, 1
global_store_dword v5, v4, s[40:41] offset:{WS_E}
L_fin:""")
    endp()
    quads = [32,36,40,44,48,52,56, 60,112,116,120,124,12,16]
    a("L_F:")
    for i in range(FQ, 8): vld(i)
    a(f"""s_lshl_b32 s12, s6, 11
s_add_u32 s12, s12, {WS_O}
v_add_u32 v2, s12, v1""")
    bar("barO")
    for w in range(7):
        for hf in range(2):
            q = quads[hf*7 + w]
            a(f"ds_read_b128 v[{q}:{q+3}], v1 offset:{L_OP + w*2048 + hf*1024}")
    a("s_waitcnt lgkmcnt(0)")
    for hf in range(2):
        Q = quads[hf*7:hf*7+7]
        for h in (0, 2):
            a(f"v_pk_add_f32 v[{Q[0]+h}:{Q[0]+h+1}], v[{Q[0]+h}:{Q[0]+h+1}], v[{Q[1]+h}:{Q[1]+h+1}]")
            a(f"v_pk_add_f32 v[{Q[2]+h}:{Q[2]+h+1}], v[{Q[2]+h}:{Q[2]+h+1}], v[{Q[3]+h}:{Q[3]+h+1}]")
            a(f"v_pk_add_f32 v[{Q[4]+h}:{Q[4]+h+1}], v[{Q[4]+h}:{Q[4]+h+1}], v[{Q[5]+h}:{Q[5]+h+1}]")
            a(f"v_pk_add_f32 v[{Q[0]+h}:{Q[0]+h+1}], v[{Q[0]+h}:{Q[0]+h+1}], v[{Q[6]+h}:{Q[6]+h+1}]")
            a(f"v_pk_add_f32 v[{Q[2]+h}:{Q[2]+h+1}], v[{Q[2]+h}:{Q[2]+h+1}], v[{Q[4]+h}:{Q[4]+h+1}]")
            a(f"v_pk_add_f32 v[{20+4*hf+h}:{21+4*hf+h}], v[{Q[0]+h}:{Q[0]+h+1}], v[{Q[2]+h}:{Q[2]+h+1}]")
    stamp(5)
    pv(False)
    lstore("o", ["global_store_dwordx4 v2, v[20:23], s[40:41]", "global_store_dwordx4 v2, v[24:27], s[40:41] offset:1024"])
    stamp(7)
    endp()
    a("L_H_far:\ns_waitcnt vmcnt(0)")
    gpub()
    spin_top("L_H_gpoll", "L_H_got")
    a(f"v_xor_b32 v12, {WS_G ^ WS_A}, v12")
    pset()
    a("s_waitcnt vmcnt(0)")
    pchk()
    a("s_cbranch_vccnz L_H_gpoll\ns_branch L_H_got")
    a("L_H_span:\ns_waitcnt vmcnt(0) lgkmcnt(0)")
    gpub()
    a(f"""v_mov_b32 v4, -1
v_mov_b32 v5, -1
v_mov_b32 v6, -1
v_mov_b32 v7, -1
s_lshl_b32 s11, s6, 11
s_add_u32 s11, s11, {WS_O}
v_add_u32 v2, s11, v1
global_store_dwordx4 v2, v[4:7], s[40:41] sc1
global_store_dwordx4 v2, v[4:7], s[40:41] offset:1024 sc1
v_add_u32 v2, {WS_P - WS_O}, v2
global_store_dwordx4 v2, v[4:7], s[40:41] sc1
global_store_dwordx4 v2, v[4:7], s[40:41] offset:1024 sc1
s_waitcnt vmcnt(0)
s_mov_b64 exec, 0xff
v_add_u32 v2, {WS_B}, v1
global_store_dwordx4 v2, v[8:11], s[54:55] sc1
s_mov_b64 exec, -1
s_lshl_b32 s11, s3, 12
s_add_u32 s11, s11, {WS_B + 4}
v_and_b32 v2, 31, v0
v_lshlrev_b32 v2, 7, v2
v_add_u32 v2, s11, v2""")
    spin_top("L_H_bpoll", "L_H_go")
    a(f"""global_load_dword v4, v2, s[40:41] sc1
s_waitcnt vmcnt(0)
v_xor_b32 v4, s14, v4
v_cmp_lt_u32 vcc, 15, v4
s_cbranch_vccnz L_H_bpoll
s_branch L_H_go""")
    if diag:
        a(f"""L_dump:
s_memtime s[94:95]
s_memrealtime s[96:97]
s_mov_b64 exec, -1
v_mov_b32 v0, 0
s_waitcnt lgkmcnt(0)""")
        regs = [60, 58] + [64 + 2*i for i in range(16)] + [96, 62]
        for i, r in enumerate(regs): a(f"v_mov_b32 v{4+i}, s{r}")
        a(f"""s_lshl_b32 s11, s99, 7
v_mov_b32 v1, s11
s_mov_b64 exec, 1""")
        for i in range(0, 20, 4): a(f"ds_write_b128 v1, v[{4+i}:{7+i}] offset:{L_TS + i*4}")
        a(f"""v_mov_b32 v2, 1
s_waitcnt lgkmcnt(0)
ds_add_rtn_u32 v3, v0, v2 offset:{L_TS + 2048}
s_waitcnt lgkmcnt(0)
v_readfirstlane_b32 s11, v3
s_cmp_lg_u32 s11, 15
s_cbranch_scc1 L_exit
s_mov_b64 exec, -1
v_mbcnt_lo_u32_b32 v1, -1, 0
v_mbcnt_hi_u32_b32 v1, -1, v1
v_lshlrev_b32 v1, 4, v1
ds_read_b128 v[4:7], v1 offset:{L_TS}
ds_read_b128 v[8:11], v1 offset:{L_TS + 1024}
s_lshl_b32 s11, s2, 11
s_add_u32 s11, s11, {TS_OFF}
s_add_u32 s40, s40, s11
s_addc_u32 s41, s41, 0
s_waitcnt lgkmcnt(0)
global_store_dwordx4 v1, v[4:7], s[40:41]
global_store_dwordx4 v1, v[8:11], s[40:41] offset:1024
s_endpgm""")
    a("L_exit:\ns_endpgm")
    a.fix()
    body = a.text()
    if diag:
        body = body.replace("    s_lshr_b32 s4, s2, 3             ; member\n", "    s_lshr_b32 s4, s2, 3\n    s_mov_b32 s99, s5\n", 1)
    refp = "cdna_kernels/" + NAME + ".s.ref"
    hdr = open(refp).read().split("; @launch")[0] if os.path.exists(refp) else ""
    return hdr + f"""; @launch grid=(256,1,1) block=(1024,1,1) lds={LDS_BYTES + (4096 if diag else 0)}
.amdgcn_target "amdgcn-amd-amdhsa--gfx950"
.text
.globl {KNAME}
.p2align 8
.type {KNAME},@function
{KNAME}:
""" + body + f""".section .rodata,"a"
.p2align 6
.amdhsa_kernel {KNAME}
  .amdhsa_next_free_vgpr 128
  .amdhsa_next_free_sgpr 102
  .amdhsa_accum_offset 128
  .amdhsa_group_segment_fixed_size 0
  .amdhsa_kernarg_size 104
  .amdhsa_user_sgpr_count 2
  .amdhsa_user_sgpr_kernarg_segment_ptr 1
  .amdhsa_system_sgpr_workgroup_id_x 1
  .amdhsa_float_denorm_mode_32 3
.end_amdhsa_kernel
"""

if __name__ == "__main__":
    open("k6.s", "w").write(gen())
    open("k6d.s", "w").write(gen(diag=True))
```

```python
import sys, struct, os
from asmx import Asm
NAME = "sequential_preLN__sliding_block_cached__mixer_token_mlp__decode"
KNAME = NAME + "_kernel"
WS_E  = 0x0
WS_ML = 0x8000
WS_A  = 0x10000
WS_O  = 0x20000
WS_P  = WS_O
WS_H  = 0x120000
WS_B  = 0x128000
WS_G  = 0x130000
WS_I  = 0x140000
WS_S  = 0x124000
WS_M  = 0x1C0000
TS_OFF = 256 << 20
L_QP, L_Q, L_SC, L_FL, L_OS, L_HS, L_YS, L_OP = 0, 4096, 5120, 6144, 6400, 6656, 8448, 10240
LDS_BYTES = 24576
L_TS = 24576
SPIN = 1 << 18
def f2u(x): return struct.unpack("<I", struct.pack("<f", x))[0]
LOG2E = 1.4426950408889634
C_SC = f2u(0.0625 * LOG2E)
GK0 = -2.0 * 0.7978845608028654 * LOG2E
GK1 = GK0 * 0.044715
DPP = "row_mask:0xf bank_mask:0xf"
NEG1 = "op_sel_hi:[1,0] neg_lo:[0,1] neg_hi:[0,1]"

def gen(diag=False, **opt):
    KH = opt.get("khold", 3)
    PD0 = opt.get("pd0", 0); PD1 = opt.get("pd1", 0)
    WO = opt.get("wo", dict(W=2))
    VP = opt.get("vp", 8); FQ = opt.get("fq", 8)
    KLOC = opt.get("kloc", 64)
    KEEP = opt.get("keep")
    NP = opt.get("np", 2); NI = opt.get("ni", 4); NH = opt.get("nh", 2)
    SIDE = opt.get("side", "vote")
    a = Asm()
    def stamp(i):
        if diag and (KEEP is None or i in KEEP): a(f"s_memtime s[{64+2*i}:{65+2*i}]")
    def cnt(i):
        if diag: a(f"s_add_u32 s{64+2*i}, s10, 1")
    def zst():
        if diag:
            for i in range(64, 94, 2): a(f"s_mov_b32 s{i}, 0")
            a("s_memrealtime s[60:61]\ns_memtime s[58:59]")
    def endp(): a("s_branch L_dump" if diag else "s_endpgm")
    def red_row(op, r):
        for m in ("quad_perm:[1,0,3,2]", "quad_perm:[2,3,0,1]", "row_half_mirror", "row_mirror"):
            a(f"{op}_dpp {r}, {r}, {r} {m} {DPP}")
    def red_x16(op, r, t): a(f"v_mov_b32 {t}, {r}\nv_permlane16_swap_b32 {t}, {r}\n{op} {r}, {r}, {t}")
    def red_x32(op, r, t): a(f"v_mov_b32 {t}, {r}\nv_permlane32_swap_b32 {t}, {r}\n{op} {r}, {r}, {t}")
    def allred(op, r, t):
        red_row(op, r); red_x16(op, r, t); red_x32(op, r, t)
    def red_hi(op, r, t):
        a(f"{op}_dpp {r}, {r}, {r} row_ror:8 {DPP}\n{op}_dpp {r}, {r}, {r} row_ror:4 {DPP}")
        red_x16(op, r, t); red_x32(op, r, t)
    def tred(r0, dst):
        a(f"""v_permlane32_swap_b32 v{r0}, v{r0+2}
v_permlane32_swap_b32 v{r0+1}, v{r0+3}
v_pk_add_f32 v[{r0}:{r0+1}], v[{r0}:{r0+1}], v[{r0+2}:{r0+3}]
v_permlane16_swap_b32 v{r0}, v{r0+1}
v_add_f32 v{dst}, v{r0}, v{r0+1}
v_add_f32_dpp v{dst}, v{dst}, v{dst} row_ror:8 {DPP}
v_add_f32_dpp v{dst}, v{dst}, v{dst} row_ror:4 {DPP}""")
    def rbf(dst, src):
        a(f"v_cvt_pk_bf16_f32 {dst}, {src}, {src}\nv_lshlrev_b32 {dst}, 16, {dst}")
    def masks(m0, t0, t1):
        a(f"""v_and_b32 {t0}, 1, v0
v_lshlrev_b32 {t0}, 4, {t0}
v_mov_b32 {t1}, 0xffff
v_lshlrev_b32 {t0}, {t0}, {t1}
v_bfe_u32 {t1}, v0, 1, 2""")
        for d in range(4): a(f"v_cmp_eq_u32 s[{44+2*d}:{45+2*d}], {d}, {t1}")
        for d in range(4): a(f"v_cndmask_b32 v{m0+d}, 0, {t0}, s[{44+2*d}:{45+2*d}]")
    def lmasks(r, mask):
        a(f"s_cmp_eq_u32 s9, 1\ns_cselect_b64 s[{r}:{r+1}], {mask}, 0\ns_cselect_b64 s[{r+2}:{r+3}], 0, {mask}")
    def lstore(r, ins):
        a(f"s_mov_b64 exec, s[{r}:{r+1}]")
        for i in ins: a(i)
        a(f"s_mov_b64 exec, s[{r+2}:{r+3}]")
        for i in ins: a(i + " sc1")
    def spoll(name, N, nld, issue, check, spec, pace=0, pre=None):
        for k in range(N - 1):
            issue(k)
            if pace: a(f"s_sleep {pace}")
        if pre: pre()
        a(f"s_mov_b32 s10, {SPIN}\nL_{name}_poll:")
        for k in range(N):
            issue((k + N - 1) % N)
            if pace: a(f"s_sleep {pace}")
            a(f"s_waitcnt vmcnt({(N - 1) * nld})")
            check(k); spec(k)
            a(f"s_cbranch_vccz L_{name}_got")
        a(f"s_sub_u32 s10, s10, 1\ns_cbranch_scc0 L_{name}_poll\nL_{name}_got:")
    def spin_top(lbl, done):
        a(f"s_mov_b32 s10, {SPIN}\n{lbl}:\ns_sub_u32 s10, s10, 1\ns_cbranch_scc1 {done}")
    def ppoll(name, N, nld, issue, check, finish, pace=0):
        for k in range(N - 1):
            issue(k)
            if pace: a(f"s_sleep {pace}")
        a(f"s_mov_b32 s10, {SPIN}\nL_{name}_poll:")
        for k in range(N):
            issue((k + N - 1) % N)
            if pace: a(f"s_sleep {pace}")
            a(f"s_waitcnt vmcnt({(N - 1) * nld})")
            check(k)
            a(f"s_cbranch_vccz L_{name}_g{k}")
        a(f"s_sub_u32 s10, s10, 1\ns_cbranch_scc0 L_{name}_poll")
        for k in range(N - 1, -1, -1):
            a(f"L_{name}_g{k}:")
            finish(k)
            if k: a(f"s_branch L_{name}_got")
        a(f"L_{name}_got:")
    def sleep(n):
        if n: a(f"s_sleep {n}")
    DS = opt.get("ds", False)
    if DS and "wo" not in opt: WO = dict(W=1, X=1)
    EXP = opt.get("exp", "")
    def bar(name):
        if "d" in EXP and name in ("bar1", "bar2"): return
        if "k" in EXP and name in ("barK", "barK2"): return
        a(f"s_barrier                       ; {name}")
    def xtag(t, regs, tag="s14"):
        a(f"v_xor_b32 {t}, {tag}, v{regs[0]}")
        for r in regs[1:]: a(f"v_bitop3_b32 {t}, v{r}, {tag}, {t} bitop3:0xbe")

    if diag: a("s_memtime s[62:63]")
    a(f"""s_cmp_ge_u32 s2, 256
s_cbranch_scc1 L_exit
s_load_dwordx16 s[16:31], s[0:1], 0
s_load_dwordx8 s[32:39], s[0:1], 64
s_load_dwordx2 s[40:41], s[0:1], 96
v_lshrrev_b32 v1, 6, v0
v_and_b32 v0, 63, v0
s_and_b32 s3, s2, 7
v_readfirstlane_b32 s5, v1
s_lshr_b32 s4, s2, 3             ; member
s_sub_u32 s5, s5, 1
s_cmp_ge_u32 s5, 7
s_cbranch_scc1 L_HS
s_lshr_b32 s11, s4, 4
s_mul_i32 s11, s11, 7
s_add_u32 s11, s11, s5           ; row0 / 32
v_lshrrev_b32 v2, 3, v0
v_lshlrev_b32 v1, 15, v2
v_bfe_u32 v3, v0, 2, 1
v_lshl_add_u32 v1, v3, 13, v1
v_and_b32 v3, 3, v0
v_lshl_add_u32 v1, v3, 4, v1
s_lshl_b32 s12, s11, 6
v_lshl_add_u32 v2, v2, 3, s12
v_min_u32 v3, 55, v0
v_lshlrev_b32 v3, 4, v3
s_lshl_b32 s11, s11, 8
s_add_u32 s11, s11, s3
s_lshl_b32 s11, s11, 4
s_and_b32 s8, s4, 15
s_add_u32 s11, s11, s8
s_lshl_b32 s11, s11, 6
v_add_u32 v4, 0x4000, v1
s_waitcnt lgkmcnt(0)
s_add_u32 s22, s22, s11
s_addc_u32 s23, s23, 0
global_load_dwordx4 v[12:15], v3, s[16:17]
global_load_dwordx2 v[16:17], v2, s[16:17]
global_load_dwordx4 v[32:35], v1, s[22:23] nt
global_load_dwordx4 v[36:39], v4, s[22:23] nt
s_branch L_WQ""")
    a(f"""L_HS:
s_lshl_b32 s6, s3, 5
s_add_u32 s6, s6, s4
s_sub_u32 s5, s5, 7
s_lshl_b32 s11, s3, 25
s_lshl_b32 s12, s4, 16
s_add_u32 s11, s11, s12
s_lshl_b32 s12, s5, 13
s_add_u32 s11, s11, s12
s_add_u32 s11, s11, {61440*512 + 4096}
s_cmp_eq_u32 s5, -8
s_cbranch_scc1 L_H
v_bfe_u32 v1, v0, 2, 2
v_lshlrev_b32 v1, 9, v1
v_lshrrev_b32 v3, 4, v0
v_lshlrev_b32 v4, 2, v3
v_and_b32 v5, 3, v0
v_add_u32 v4, v4, v5
v_lshlrev_b32 v6, 4, v4          ; (slab*4+qt)*16
v_add_u32 v1, v1, v6
v_lshlrev_b32 v2, 9, v3
v_and_b32 v5, 15, v0
v_lshl_add_u32 v2, v5, 4, v2
s_waitcnt lgkmcnt(0)
s_add_u32 s52, s18, s11
s_addc_u32 s53, s19, 0
s_add_u32 s54, s20, s11
s_addc_u32 s55, s21, 0""")
    if SIDE == "vote": a("s_cmp_ge_u32 s5, 6\ns_cbranch_scc1 L_probe\nL_S0:")
    def kld(i): a(f"global_load_dwordx4 v[{32+4*i}:{35+4*i}], v1, s[52:53] offset:{(i//2)*2048+(i%2)*256-4096} nt")
    def vld(i): a(f"global_load_dwordx4 v[{64+4*i}:{67+4*i}], v2, s[54:55] offset:{(i//2)*2048+(i%2)*256-4096} nt")
    for i in range(KH): kld(i)
    zst(); stamp(0)
    a("s_branch L_S")

    if SIDE == "vote":
        NV = opt.get("nv", 8)
        a(f"""L_probe:
s_cmp_ge_u32 s4, {NV}
s_cbranch_scc1 L_S0
s_lshr_b32 s11, s6, 6
s_lshl_b32 s11, s11, 14
s_and_b32 s42, s6, 63
s_lshl_b32 s42, s42, 7
s_add_u32 s11, s11, s42
s_and_b32 s43, s5, 1
s_lshl_b32 s42, s43, 13
s_add_u32 s11, s11, s42
s_add_u32 s11, s11, {WS_M}
s_lshl_b32 s43, s43, 2
v_mov_b32 v5, s43
s_memtime s[44:45]
s_waitcnt lgkmcnt(0)
s_load_dword s48, s[40:41], s11
s_waitcnt lgkmcnt(0)
s_memtime s[46:47]
s_waitcnt lgkmcnt(0)
s_sub_u32 s48, s46, s44
v_mov_b32 v4, s48
ds_write_b32 v5, v4 offset:{L_FL + 16}
s_branch L_S0""")
    a(f"""L_H:
s_setprio 3
v_lshlrev_b32 v1, 4, v0          ; lane*16
s_getreg_b32 s7, hwreg(HW_REG_XCC_ID, 0, 3)
s_lshl_b32 s12, s6, 7
v_mov_b32 v8, 0
v_mov_b32 v9, 0
v_mov_b32 v10, 0
v_mov_b32 v11, 0
v_and_b32 v2, 31, v0
v_lshlrev_b32 v2, 4, v2
ds_write_b128 v2, v[8:11] offset:{L_QP + 28*128}""")
    if diag: a(f"ds_write_b128 v2, v[8:11] offset:{L_TS + 2048}")
    a(f"""s_lshl_b32 s11, s3, 13
s_add_u32 s11, s11, {WS_A + 4096}
v_add_u32 v12, s11, v1
v_and_b32 v3, 7, v0
v_lshlrev_b32 v3, 5, v3
v_lshrrev_b32 v2, 5, v0
v_lshl_add_u32 v3, v2, 4, v3
s_lshl_b32 s11, s6, 8
s_add_u32 s11, s11, {WS_A}
v_add_u32 v3, s11, v3
s_mov_b32 s50, 0xff
s_mov_b32 s51, 0xff""")
    a("s_waitcnt lgkmcnt(0)")
    a(f"s_load_dword s13, s[40:41], {WS_E}")
    a(f"""s_add_u32 s54, s40, s12
s_addc_u32 s55, s41, 0
""")
    HW = opt.get("hw", "AM")
    if HW:
        a("; values unused: a line that is stored later is only served from L2 once it has been read")
        if "A" in HW: a("s_mov_b64 exec, s[50:51]\nglobal_load_dword v14, v3, s[40:41] nt\ns_mov_b64 exec, -1")
        if "M" in HW: a(f"v_mov_b32 v2, {WS_ML}\ns_mov_b64 exec, 1\nglobal_load_dword v14, v2, s[54:55] nt\ns_mov_b64 exec, -1")
        if "H" in HW: a(f"s_lshl_b32 s12, s6, 6\ns_add_u32 s12, s12, {WS_H}\nv_mov_b32 v2, s12\ns_mov_b64 exec, 1\nglobal_load_dword v14, v2, s[40:41] nt\ns_mov_b64 exec, -1")
        if "I" in HW:
            a(f"""s_min_u32 s12, s4, 27
s_lshr_b32 s15, s12, 3
s_lshl_b32 s15, s15, 14
s_and_b32 s12, s12, 7
s_lshl_b32 s12, s12, 10
s_add_u32 s12, s12, s15
s_lshl_b32 s15, s3, 16
s_add_u32 s12, s12, s15
s_add_u32 s12, s12, {WS_I}
v_and_b32 v2, 7, v0
v_lshlrev_b32 v2, 7, v2
v_bfe_u32 v13, v0, 3, 1
v_lshl_add_u32 v2, v13, 13, v2
v_add_u32 v2, s12, v2
s_mov_b64 exec, 0xffff
global_load_dword v14, v2, s[40:41] nt
s_mov_b64 exec, -1""")
    a(f"""s_cmp_lt_u32 s4, 28
s_cbranch_scc1 L_H_1
; a few workgroups per group pull the kernel's code into L2
s_getpc_b64 s[56:57]
L_pc:
s_sub_u32 s56, s56, L_pc-{KNAME}
s_subb_u32 s57, s57, 0
v_lshlrev_b32 v2, 7, v0
v_min_u32 v13, L_exit-{KNAME}, v2
global_load_dword v14, v13, s[56:57]
v_add_u32 v2, 0x2000, v2
v_min_u32 v13, L_exit-{KNAME}, v2
global_load_dword v14, v13, s[56:57]
L_H_1:""")
    a("s_waitcnt lgkmcnt(0)")
    a(f"""s_add_u32 s14, s13, 0x9e3779b0
s_and_b32 s14, s14, -16
s_or_b32 s15, s14, s7            ; own tag: base | vote << 3 | xcc
v_mov_b32 v9, s15
v_mov_b32 v11, s15
v_mov_b32 v13, 0""")
    zst()
    stamp(0)
    a("s_branch L_H2")

    a(f"""L_WQ:
s_setprio 2
s_lshl_b32 s6, s3, 5
s_add_u32 s6, s6, s4
v_mov_b32 v4, -1
v_mov_b32 v5, -1
v_mov_b32 v6, -1
v_mov_b32 v7, -1
s_lshl_b32 s12, s6, 11
s_add_u32 s13, s12, {WS_O}
s_lshl_b32 s11, s5, 10
s_add_u32 s11, s11, s13
s_cmp_lt_u32 s5, 2
s_cselect_b32 s11, s11, s13
s_cselect_b64 exec, -1, 1
v_lshl_add_u32 v1, v0, 4, s11""")
    EW = opt.get("ew", "O"); EF = opt.get("ef", "nt")
    if "O" in EW: a(f"global_load_dwordx4 v[44:47], v1, s[40:41] {EF}")
    a(f"""global_store_dwordx4 v1, v[4:7], s[40:41]
s_mov_b64 exec, -1
v_and_b32 v3, 7, v0
v_lshlrev_b32 v40, 5, v3
v_bfe_u32 v2, v0, 4, 1
v_lshl_add_u32 v40, v2, 4, v40
v_lshrrev_b32 v2, 5, v0
v_lshl_add_u32 v40, v2, 3, v40
s_lshl_b32 s11, s5, 8
s_add_u32 s11, s11, s12
s_add_u32 s11, s11, {WS_P}
v_add_u32 v40, s11, v40
s_mov_b32 s56, 0x00ff00ff
s_mov_b32 s57, 0x00ff00ff""")
    PF = "-"
    def pfill(key):
        if PF != key: return
        a("v_mov_b32 v6, -1\nv_mov_b32 v7, -1\ns_mov_b64 exec, s[56:57]")
        a("global_store_dwordx2 v40, v[6:7], s[40:41]")
        a("s_mov_b64 exec, -1")
    if "P" in EW: a(f"s_mov_b64 exec, s[56:57]\nglobal_load_dwordx2 v[42:43], v40, s[40:41] {EF}\ns_mov_b64 exec, -1")
    pfill("0")
    NF = (1 if PF == "0" else 0) + ("O" in EW) + ("P" in EW)
    zst(); stamp(0)
    masks(8, "v4", "v5")
    a(f"""s_mov_b32 s12, -1
s_mov_b32 s13, 0x00ffffff
v_bfe_u32 v4, v0, 2, 1
v_lshrrev_b32 v5, 5, v0
v_lshl_add_u32 v4, v4, 1, v5
s_lshl_b32 s11, s5, 2
v_add_u32 v4, s11, v4
v_lshlrev_b32 v7, 7, v4
v_and_b32 v4, 3, v0
v_lshl_add_u32 v7, v4, 5, v7
v_bfe_u32 v4, v0, 4, 1
v_lshl_add_u32 v7, v4, 4, v7
s_mov_b32 s14, 0x01000100
s_mov_b32 s15, 0x03020302
s_mov_b32 s42, 0xffff0000
s_mov_b32 s43, {f2u(1.0/448)}
v_mov_b32 v4, 0
v_mov_b32 v6, 0
s_waitcnt vmcnt({4+NF})""")
    stamp(1)
    for i in range(4):
        a(f"v_lshlrev_b32 v{20+2*i}, 16, v{12+i}\nv_and_b32 v{21+2*i}, s42, v{12+i}")
    a("""v_pk_add_f32 v[28:29], v[20:21], v[22:23]
v_pk_add_f32 v[30:31], v[24:25], v[26:27]
v_pk_add_f32 v[28:29], v[28:29], v[30:31]
s_mov_b64 exec, s[12:13]
v_add_f32 v4, v28, v29
s_mov_b64 exec, -1""")
    allred("v_add_f32", "v4", "v5")
    a("v_mul_f32 v4, s43, v4          ; mean")
    for i in range(4): a(f"v_pk_add_f32 v[{20+2*i}:{21+2*i}], v[{20+2*i}:{21+2*i}], v[4:5] {NEG1}")
    a("v_pk_mul_f32 v[28:29], v[20:21], v[20:21]")
    for i in range(1, 4): a(f"v_pk_fma_f32 v[28:29], v[{20+2*i}:{21+2*i}], v[{20+2*i}:{21+2*i}], v[28:29]")
    a("s_mov_b64 exec, s[12:13]\nv_add_f32 v6, v28, v29\ns_mov_b64 exec, -1")
    allred("v_add_f32", "v6", "v5")
    a("v_mul_f32 v6, s43, v6          ; var")
    rbf("v4", "v4"); rbf("v6", "v6")
    a(f"v_add_f32 v6, {f2u(1e-5)}, v6"); rbf("v6", "v6")
    a("v_sqrt_f32 v6, v6"); rbf("v6", "v6")
    a(f"v_rcp_f32 v6, v6\ns_waitcnt vmcnt({3+NF})")
    for i in range(2):
        a(f"v_lshlrev_b32 v{20+2*i}, 16, v{16+i}\nv_and_b32 v{21+2*i}, s42, v{16+i}")
    for i in range(2): a(f"v_pk_add_f32 v[{20+2*i}:{21+2*i}], v[{20+2*i}:{21+2*i}], v[4:5] {NEG1}")
    for i in range(2): a(f"v_cvt_pk_bf16_f32 v{16+i}, v{20+2*i}, v{21+2*i}")
    for i in range(2):
        a(f"v_lshlrev_b32 v{20+2*i}, 16, v{16+i}\nv_and_b32 v{21+2*i}, s42, v{16+i}")
    for i in range(2): a(f"v_pk_mul_f32 v[{20+2*i}:{21+2*i}], v[{20+2*i}:{21+2*i}], v[6:7] op_sel_hi:[1,0]")
    for i in range(2): a(f"v_cvt_pk_bf16_f32 v{16+i}, v{20+2*i}, v{21+2*i}")
    for t in range(2):
        for e in range(2):
            a(f"v_perm_b32 v4, v{16+t}, v{16+t}, s{14+e}")
            for d in range(4): a(f"v_and_b32 v{48+(t*2+e)*4+d}, v4, v{8+d}")
    a("s_mov_b32 s44, 0xf0f0f0f0\ns_mov_b32 s45, 0xf0f0f0f0\ns_mov_b32 s46, 0x00ff00ff\ns_mov_b32 s47, 0xff00ff00")
    for t in range(2):
        a(f"s_waitcnt vmcnt({2+NF-t})")
        if t == 1: stamp(2)
        for e in range(2):
            c = "0" if t == 0 else f"v[{20+4*e}:{23+4*e}]"
            a(f"v_mfma_f32_16x16x32_bf16 v[{20+4*e}:{23+4*e}], v[{48+(t*2+e)*4}:{51+(t*2+e)*4}], v[{32+4*t}:{35+4*t}], {c}")
    for r in range(4): a(f"v_cndmask_b32 v{20+r}, v{20+r}, v{24+r}, s[44:45]")
    a(f"""s_mov_b64 exec, s[46:47]
ds_write_b128 v7, v[20:23] offset:{L_QP}
s_waitcnt lgkmcnt(0)""")
    stamp(3)
    bar("bar1")
    a(f"""s_mov_b64 exec, -1
s_setprio 0
s_lshl_b32 s11, s3, 9
s_bfe_u32 s12, s4, 0x10003
s_lshl_b32 s12, s12, 8
s_add_u32 s11, s11, s12
s_lshr_b32 s12, s4, 4
s_lshl_b32 s12, s12, 7
s_add_u32 s11, s11, s12
s_bfe_u32 s12, s4, 0x10001
s_lshl_b32 s12, s12, 6
s_add_u32 s11, s11, s12
s_and_b32 s12, s4, 1
s_lshl_b32 s12, s12, 5
s_add_u32 s11, s11, s12
s_bfe_u32 s12, s4, 0x10002
s_lshl_b32 s12, s12, 2
s_add_u32 s11, s11, s12
v_lshrrev_b32 v2, 4, v0
v_lshlrev_b32 v2, 3, v2
v_bfe_u32 v1, v0, 3, 1
v_add3_u32 v2, v2, v1, s11
v_mul_u32_u24 v2, 896, v2
v_and_b32 v3, 7, v0
v_lshl_add_u32 v2, v3, 4, v2
s_lshl_b32 s12, s5, 7
v_add_u32 v2, s12, v2            ; wo offset
v_lshrrev_b32 v1, 3, v0
v_lshlrev_b32 v1, 3, v1
v_mov_b32 v5, 0""")
    bar("bar2")
    a("s_waitcnt vmcnt(0)               ; the fills have landed before anything of this workgroup is stored or announced")
    bar("barK"); bar("barK2")
    pfill("K")
    nt = [0]
    def wold(key):
        for _ in range(WO.get(key, 0)):
            t = nt[0]; nt[0] += 1
            if "e" not in EXP: a(f"global_load_dwordx4 v[{32+4*t}:{35+4*t}], v2, s[24:25] offset:{1792*t} nt")
    bar("barQ")
    a(f"ds_read_b32 v3, v5 offset:{L_FL}")
    a("s_waitcnt lgkmcnt(0)\nv_readfirstlane_b32 s9, v3")
    lmasks(48, "s[56:57]")
    wold("Q")
    bar("barM"); wold("M")
    bar("barW"); wold("W")
    if DS: bar("barW2"); wold("X")
    bar("barO"); wold("O")
    assert nt[0] == 2
    stamp(4)
    if diag and KEEP is None:
        a("s_waitcnt vmcnt(0)"); stamp(5)
    a("s_waitcnt vmcnt(0)")
    bar("barS")
    a(f"ds_read_b64 v[12:13], v1 offset:{L_OS}\ns_waitcnt lgkmcnt(0)")
    for d in range(4): a(f"v_and_b32 v{48+d}, v12, v{8+d}")
    for d in range(2): a(f"v_and_b32 v{52+d}, v13, v{8+d}")
    a("v_mfma_f32_16x16x32_bf16 v[20:23], v[48:51], v[32:35], 0")
    for d in range(2, 4): a(f"v_and_b32 v{52+d}, v13, v{8+d}")
    a("v_mfma_f32_16x16x32_bf16 v[20:23], v[52:55], v[36:39], v[20:23]")
    a(f"""v_permlane32_swap_b32 v20, v22
v_permlane32_swap_b32 v21, v23
v_add_f32_dpp v20, v22, v20 row_ror:8 {DPP}
v_add_f32_dpp v21, v23, v21 row_ror:8 {DPP}
v_or_b32 v20, 1, v20
v_or_b32 v21, 1, v21""")
    lstore(48, ["global_store_dwordx2 v40, v[20:21], s[40:41]"])
    stamp(6)
    endp()

    def pset(sel=False):
        for i in range(8):
            if sel: a(f"s_mov_b64 exec, s[{18+2*i}:{19+2*i}]")
            a(f"global_load_dwordx4 v[{64+4*i}:{67+4*i}], v12, s[40:41] offset:{1024*i-4096} sc1")
        if sel: a("s_mov_b64 exec, -1")
    def pchk():
        for i in range(8): a(f"v_xor_b32 v{16+i}, s15, v{65+4*i}")
        for i in range(8): a(f"v_bitop3_b32 v{16+i}, v{67+4*i}, s15, v{16+i} bitop3:0xbe")
        for i in range(8): a(f"v_cmp_lt_u32 s[{18+2*i}:{19+2*i}], 15, v{16+i}")
        a("v_or3_b32 v4, v16, v17, v18\nv_or3_b32 v5, v19, v20, v21\nv_or3_b32 v4, v4, v22, v23\nv_or_b32 v4, v4, v5\nv_cmp_lt_u32 vcc, 15, v4")
    def gpub():
        a(f"v_xor_b32 v2, {WS_G ^ WS_A}, v3\ns_mov_b64 exec, s[50:51]\nglobal_store_dwordx4 v2, v[8:11], s[40:41] sc1\ns_mov_b64 exec, -1")
    a("L_H2:")
    bar("bar1")
    a(f"""ds_read_b128 v[16:19], v1 offset:{L_QP}
ds_read_b128 v[20:23], v1 offset:{L_QP+1024}
ds_read_b128 v[24:27], v1 offset:{L_QP+2048}
ds_read_b128 v[28:31], v1 offset:{L_QP+3072}""")
    if SIDE == "vote": a(f"s_cmp_ge_u32 s4, {NV}\ns_cbranch_scc1 L_H_nv\nds_read_b64 v[6:7], v13 offset:{L_FL + 16}\ns_waitcnt lgkmcnt(0)\nv_cmp_gt_u32 vcc, v6, v7\nv_addc_co_u32 v13, vcc, 0, v13, vcc\nv_lshl_or_b32 v9, v13, 3, v9\nv_mov_b32 v11, v9\nL_H_nv:")
    a(f"""s_waitcnt lgkmcnt(0)
v_pk_add_f32 v[16:17], v[16:17], v[20:21]
v_pk_add_f32 v[18:19], v[18:19], v[22:23]
v_pk_add_f32 v[24:25], v[24:25], v[28:29]
v_pk_add_f32 v[26:27], v[26:27], v[30:31]
v_pk_add_f32 v[16:17], v[16:17], v[24:25]
v_pk_add_f32 v[18:19], v[18:19], v[26:27]
v_permlane32_swap_b32 v16, v18
v_permlane32_swap_b32 v17, v19
v_pk_add_f32 v[16:17], v[16:17], v[18:19]
v_add_f32_dpp v16, v16, v16 row_ror:8 {DPP}
v_add_f32_dpp v17, v17, v17 row_ror:8 {DPP}
v_mov_b32 v18, v16
v_mov_b32 v19, v17
v_permlane16_swap_b32 v18, v16
v_permlane16_swap_b32 v19, v17
v_add_f32 v8, v16, v18
v_add_f32 v10, v17, v19
s_mov_b64 exec, s[50:51]
global_store_dwordx4 v3, v[8:11], s[40:41]
s_mov_b64 exec, -1""")
    stamp(2)
    a("v_readfirstlane_b32 s15, v9")
    bar("bar2"); bar("barK")
    sleep(PD0)
    if "p" not in EXP: pset()
    a(f"""; the fills of this workgroup have landed: say so in the ML words (tag ^ 1: no values yet)
s_xor_b32 s12, s14, 1
v_mov_b32 v5, s12
v_mov_b32 v7, s12
v_add_u32 v2, {WS_ML}, v1
s_mov_b64 exec, 3
global_store_dwordx4 v2, v[4:7], s[54:55]
s_mov_b64 exec, -1""")
    bar("barK2")
    a(f"""s_lshl_b32 s11, s3, 12
s_add_u32 s11, s11, {WS_ML + 4}
v_and_b32 v15, 31, v0
v_lshlrev_b32 v15, 7, v15
v_add_u32 v15, s11, v15""")
    a(f"s_mov_b32 s10, {KLOC}\nL_H_poll:\ns_waitcnt vmcnt(0)")
    pchk()
    a("s_cbranch_vccz L_H_got" if "c" not in EXP else "v_mov_b32 v4, 0\ns_branch L_H_got")
    sleep(PD1)
    pset(True)
    a(f"""s_sub_u32 s10, s10, 1
s_cbranch_scc0 L_H_poll
s_branch L_H_far
L_H_got:
global_load_dword v44, v15, s[40:41] sc1""")
    cnt(13)
    for i in range(4):
        a(f"v_add_f32 v16, v{64+4*i}, v{80+4*i}\nv_add_f32 v17, v{66+4*i}, v{82+4*i}\nv_cvt_pk_bf16_f32 v{20+i}, v16, v17")
    a(f"""v_and_b32 v4, 7, v4
v_cmp_ne_u32 vcc, 0, v4
v_lshlrev_b32 v2, 2, v0
s_cmp_eq_u64 vcc, 0
s_cselect_b32 s9, 1, 0
ds_write2st64_b32 v2, v20, v21 offset0:{L_Q//256} offset1:{L_Q//256+1}
ds_write2st64_b32 v2, v22, v23 offset0:{L_Q//256+2} offset1:{L_Q//256+3}
v_mov_b32 v4, s9
v_mov_b32 v5, s14
v_mov_b32 v6, s13
v_mov_b32 v2, 0
ds_write_b96 v2, v[4:6] offset:{L_FL}
s_cbranch_scc0 L_H_span
L_H_go:
s_waitcnt lgkmcnt(0)""")
    stamp(3)
    bar("barQ")
    a(f"""s_mov_b32 s42, {C_SC}
v_lshrrev_b32 v2, 5, v0
v_lshlrev_b32 v9, 4, v2
v_add_u32 v9, {WS_ML}, v9        ; own ML words
v_mov_b32 v53, s14
v_mov_b32 v55, s14
s_min_u32 s43, s4, 27
v_and_b32 v3, 7, v0
v_lshl_add_u32 v5, v3, 1, v2
s_lshl_b32 s12, s43, 4
v_add_u32 v5, s12, v5
v_lshlrev_b32 v5, 1, v5
global_load_ushort v31, v5, s[16:17]
v_lshrrev_b32 v8, 2, v0
s_lshl_b32 s11, s3, 5
v_add_u32 v8, s11, v8
v_lshlrev_b32 v12, 11, v8
v_and_b32 v6, 3, v0
v_lshl_add_u32 v12, v6, 4, v12
s_lshl_b32 s12, s43, 6
s_add_u32 s12, s12, {WS_P}
v_add_u32 v24, s12, v12
v_add_u32 v25, 0x8000, v24
s_lshl_b32 s12, s6, 11
s_add_u32 s12, s12, {WS_O}
v_add_u32 v12, s12, v1
v_lshlrev_b32 v8, 7, v8
s_bfe_u32 s12, s4, 0x10003       ; head
s_lshl_b32 s12, s12, 4
s_add_u32 s12, s12, {WS_ML}
v_add_u32 v8, s12, v8
v_lshrrev_b32 v4, 4, v0
v_and_b32 v10, 1, v4
v_lshlrev_b32 v10, 3, v10
v_lshl_add_u32 v10, v2, 2, v10
v_lshl_add_u32 v10, v6, 4, v10
s_lshr_b32 s12, s43, 3
s_lshl_b32 s12, s12, 14
s_and_b32 s11, s43, 7
s_lshl_b32 s11, s11, 10
s_add_u32 s12, s12, s11
s_add_u32 s12, s12, {WS_I}
v_bfe_u32 v26, v0, 2, 2
v_lshlrev_b32 v26, 16, v26
v_lshl_add_u32 v6, v6, 2, v4
v_lshl_add_u32 v26, v6, 3, v26
s_lshl_b32 s11, s3, 7
s_add_u32 s11, s11, s12
v_add_u32 v26, s11, v26
v_add_u32 v27, {4*65536}, v26    ; destinations 4..7
s_lshl_b32 s11, s3, 16
s_add_u32 s12, s12, s11
v_add_u32 v28, s12, v1""")
    if SIDE == "vote":
        a("; the group's side: the votes of its first members (every member sees the same tags)\nv_bfe_u32 v16, v65, 3, 1")
        for i in range(1, NV // 4): a(f"v_bfe_u32 v17, v{65+4*i}, 3, 1\nv_add_u32 v16, v16, v17")
        a(f"""v_readlane_b32 s44, v16, 0
v_readlane_b32 s45, v16, 16
v_readlane_b32 s46, v16, 32
v_readlane_b32 s47, v16, 48
s_add_u32 s44, s44, s45
s_add_u32 s46, s46, s47
s_add_u32 s44, s44, s46
s_sub_u32 s45, {NV}, s44
s_bitcmp1_b32 s7, 2
s_cselect_b32 s44, s45, s44      ; votes for "address bit 13 = 1 lies on the side of XCDs 0..3"
s_cselect_b32 s45, 0x2000, 0
s_or_b32 s44, s44, s45           ; | (xcc >> 2) << 13
v_bfe_u32 v30, v0, 2, 2
v_lshlrev_b32 v30, 7, v30
s_lshl_b32 s12, s3, 10
s_add_u32 s12, s12, {WS_S}
v_add_u32 v30, s12, v30          ; side words of destinations 0..3 (+512: 4..7)
s_cmp_lg_u32 s4, {opt.get("sdm", 0)}
s_cbranch_scc1 L_H_sd
v_mov_b32 v16, s44
v_mov_b32 v17, s14
s_lshl_b32 s12, s3, 7
s_add_u32 s12, s12, {WS_S}
v_lshl_add_u32 v18, v0, 10, s12
s_mov_b64 exec, 0xff
global_store_dwordx2 v18, v[16:17], s[40:41] sc1
s_mov_b64 exec, -1
L_H_sd:""")
        if diag: a("s_lshr_b32 s66, s44, 13\ns_add_u32 s66, s66, 1\ns_bfe_u32 s12, s15, 0x10003\ns_lshl_b32 s12, s12, 4\ns_add_u32 s66, s66, s12")
        a("v_xor_b32 v14, 0x2000, v28")
    elif SIDE is not None:
        a(f"v_add_u32 v{26 + (SIDE ^ 1)}, 0x2000, v{26 + (SIDE ^ 1)}\ns_lshr_b32 s12, s3, 2\ns_xor_b32 s12, s12, {SIDE}\ns_lshl_b32 s12, s12, 13\nv_add_u32 v28, s12, v28")
    else:
        a("s_lshl_b32 s12, s43, 13\ns_and_b32 s12, s12, 0x2000\nv_add_u32 v26, s12, v26\nv_add_u32 v27, s12, v27\nv_add_u32 v28, s12, v28")
    a(f"""s_lshl_b32 s12, s3, 5
s_add_u32 s12, s12, s43
s_lshl_b32 s12, s12, 6
s_add_u32 s12, s12, {WS_H}
v_lshl_add_u32 v29, v0, 3, s12
s_mov_b32 s56, 1
s_mov_b32 s57, 1""")
    lmasks(44, "0xff")
    bar("barM")
    a(f"""ds_read_b128 v[48:51], v1 offset:{L_SC}
s_waitcnt lgkmcnt(0)
v_max3_f32 v52, v48, v49, v50
v_max_f32 v52, v52, v51""")
    red_row("v_max_f32", "v52"); red_x16("v_max_f32", "v52", "v5")
    for r in range(4): a(f"v_sub_f32 v{48+r}, v{48+r}, v52")
    for r in range(4): a(f"v_mul_f32 v{48+r}, s42, v{48+r}")
    for r in range(4): a(f"v_exp_f32 v{48+r}, v{48+r}")
    a("v_add_f32 v48, v48, v49\nv_add_f32 v50, v50, v51\nv_add_f32 v54, v48, v50")
    red_row("v_add_f32", "v54"); red_x16("v_add_f32", "v54", "v5")
    a("""s_mov_b64 exec, s[56:57]
s_cmp_eq_u32 s9, 1
s_cbranch_scc1 L_ml_f
global_store_dwordx4 v9, v[52:55], s[54:55] sc1
s_branch L_ml_d
L_ml_f:
global_store_dwordx4 v9, v[52:55], s[54:55]
L_ml_d:""")
    a("s_mov_b64 exec, -1")
    stamp(4)
    def mlld():
        for i in range(2): a(f"global_load_dwordx4 v[{32+4*i}:{35+4*i}], v8, s[40:41] offset:{2048*i} sc1")
    def old(sel):
        for i in range(2):
            if sel: a(f"s_mov_b64 exec, s[{18+2*i}:{19+2*i}]")
            a(f"global_load_dwordx4 v[{48+4*i}:{51+4*i}], v{12+i}, s[40:41] sc1")
        if sel: a("s_mov_b64 exec, -1")
    mlld()
    def sdld(): a("global_load_dwordx2 v[40:41], v30, s[40:41] sc1\nglobal_load_dwordx2 v[42:43], v30, s[40:41] offset:512 sc1")
    SDP = opt.get("sdp", "W")
    if SIDE == "vote" and SDP == "W": sdld()
    WARM = opt.get("warm", "H"); WF = opt.get("wf", "sc1")
    if "O" in WARM: a(f"global_load_dwordx4 v[48:51], v12, s[40:41] {WF}\nglobal_load_dwordx4 v[52:55], v13, s[40:41] {WF}")
    if "P" in WARM: a(f"global_load_dwordx4 v[64:67], v24, s[40:41] {WF}\nglobal_load_dwordx4 v[68:71], v25, s[40:41] {WF}")
    if "I" in WARM:
        a(f"global_load_dwordx4 v[96:99], v28, s[40:41] {WF}")
        if SIDE == "vote": a(f"global_load_dwordx4 v[100:103], v14, s[40:41] {WF}")
    bar("barW")
    NT = 4 + (2 if SIDE == "vote" and SDP == "W" else 0) + ("I" in WARM) * (2 if SIDE == "vote" else 1)
    a(f"""s_mov_b32 s10, {SPIN}
s_waitcnt vmcnt({NT})
L_T_chk:""")
    a(f"""v_xor_b32 v5, s14, v44
v_cmp_lt_u32 vcc, 1, v5
s_cbranch_vccnz L_T_poll
L_T_got:""")
    bar("barO")
    stamp(5)
    a("s_waitcnt vmcnt(0)")
    xtag("v5", (33, 35, 37, 39))
    a("""v_cmp_ne_u32 vcc, 0, v5
s_cbranch_vccz L_ML_got
L_ML_poll:""")
    NO = opt.get("no", 2)
    OB = [56, 72, 80]
    def o_issue(k): a(f"global_load_dwordx4 v[{OB[k]}:{OB[k]+3}], v12, s[40:41] sc1\nglobal_load_dwordx4 v[{OB[k]+4}:{OB[k]+7}], v12, s[40:41] offset:1024 sc1")
    mlld()
    a("s_waitcnt vmcnt(0)")
    xtag("v5", (33, 35, 37, 39))
    a("""v_cmp_ne_u32 vcc, 0, v5
s_cbranch_vccz L_ML_got
s_sub_u32 s10, s10, 1
s_cbranch_scc0 L_ML_poll
L_ML_got:""")
    if SIDE == "vote" and SDP == "T": sdld()
    def weights():
        a("v_max_f32 v20, v32, v36")
        red_hi("v_max_f32", "v20", "v5")
        a("""v_sub_f32 v32, v32, v20
v_sub_f32 v36, v36, v20
v_mul_f32 v32, s42, v32
v_mul_f32 v36, s42, v36
v_exp_f32 v32, v32
v_exp_f32 v36, v36
v_mul_f32 v21, v32, v34
v_fmac_f32 v21, v36, v38""")
        red_hi("v_add_f32", "v21", "v5")
        a("v_rcp_f32 v21, v21\nv_mul_f32 v32, v32, v21\nv_mul_f32 v36, v36, v21")
        stamp(6)
    def o_check(k):
        r = OB[k]
        a(f"v_max3_u32 v5, v{r}, v{r+1}, v{r+2}\nv_max3_u32 v6, v{r+3}, v{r+4}, v{r+5}\nv_max3_u32 v5, v5, v{r+6}, v{r+7}\nv_max_u32 v5, v5, v6\nv_cmp_eq_u32 vcc, -1, v5")
    def o_spec(k):
        r = OB[k]
        a(f"""v_pk_mul_f32 v[48:49], v[{r}:{r+1}], v[32:33] op_sel_hi:[1,0]
v_pk_mul_f32 v[50:51], v[{r+2}:{r+3}], v[32:33] op_sel_hi:[1,0]
v_pk_fma_f32 v[48:49], v[{r+4}:{r+5}], v[36:37], v[48:49] op_sel_hi:[1,0,1]
v_pk_fma_f32 v[50:51], v[{r+6}:{r+7}], v[36:37], v[50:51] op_sel_hi:[1,0,1]""")
        if opt.get("ospec", 1) > 1: tred(48, 48)
    if DS:
        weights()
        a("s_waitcnt vmcnt(0)")
        spoll("O", NO, 2, o_issue, o_check, o_spec, opt.get("opace", 0))
    else: spoll("O", NO, 2, o_issue, o_check, o_spec, opt.get("opace", 0), weights)
    cnt(12)
    stamp(7)
    if opt.get("ospec", 1) <= 1: tred(48, 48)
    a(f"""v_cvt_pk_bf16_f32 v48, v48, v48
ds_write_b32 v10, v48 offset:{L_OS}""")
    if SIDE == "vote" and SDP == "S": sdld()
    a("s_waitcnt lgkmcnt(0)")
    bar("barS")
    JAN = opt.get("jan", 0)
    a(f"s_cmp_ge_u32 s4, 28\ns_cbranch_scc1 {'L_jan' if JAN else 'L_fin'}")
    a("v_lshlrev_b32 v31, 16, v31\nv_mov_b32 v49, s14")
    if opt.get("hh", True):
        a(f"""s_lshl_b32 s12, s3, 11
s_add_u32 s12, s12, {WS_H}
v_add_u32 v3, s12, v1
s_mul_i32 s11, s3, 28
s_add_u32 s11, s11, s4
s_lshl_b32 s11, s11, 3
s_add_u32 s12, s12, s11
v_mov_b32 v4, s12
s_mov_b32 s43, 0xffff0000
s_mov_b32 s48, {f2u(1.0/448)}
s_mov_b32 s49, {f2u(1e-5)}
s_mov_b32 s50, -1
s_mov_b32 s51, 0xffff""")

    if SIDE == "vote":
        a(f"s_mov_b32 s10, {SPIN}\ns_branch L_SD_chk\nL_SD_poll:\ns_sub_u32 s10, s10, 1\ns_cbranch_scc1 L_SD_got")
        sdld()
        a("L_SD_chk:\ns_waitcnt vmcnt(0)")
        xtag("v5", (41, 43))
        a(f"""v_cmp_ne_u32 vcc, 0, v5
s_cbranch_vccnz L_SD_poll
L_SD_got:
; every workgroup reads the same eight words: side(d) = majority ^ (xcc(d) >> 2)
v_add_u32 v5, v40, v42
v_and_b32 v5, 0xff, v5
v_add_u32_dpp v5, v5, v5 row_ror:8 {DPP}
v_add_u32_dpp v5, v5, v5 row_ror:4 {DPP}
s_and_b32 s12, s3, 3
s_lshl_b32 s12, s12, 2
v_cmp_lt_u32 vcc, {4*NV}, v5
v_cndmask_b32 v5, 0, -1, vcc
v_xor_b32 v40, v40, v5
v_xor_b32 v42, v42, v5
v_and_b32 v40, 0x2000, v40
v_and_b32 v42, 0x2000, v42
v_add_u32 v26, v26, v40
v_add_u32 v27, v27, v42
v_readlane_b32 s38, v40, s12
v_readlane_b32 s39, v42, s12
s_cmp_lt_u32 s3, 4
s_cselect_b32 s38, s38, s39
v_add_u32 v28, s38, v28""")
        if "J" in WARM: a(f"global_load_dwordx4 v[96:99], v28, s[40:41] {WF}")
    if opt.get("hh", True):
        a("s_waitcnt vmcnt(0)")
        for r in (112, 8, 54): a(f"v_mov_b32 v{r+5}, s14\nv_mov_b32 v{r+7}, s14")
    sleep(opt.get("pdl", 0))
    def p_issue(k): a(f"global_load_dwordx4 v[{64+8*k}:{67+8*k}], v24, s[40:41] sc1\nglobal_load_dwordx4 v[{68+8*k}:{71+8*k}], v25, s[40:41] sc1")
    def p_check(k):
        r = 64 + 8 * k
        a(f"""v_max3_u32 v5, v{r}, v{r+1}, v{r+2}
v_bitop3_b32 v7, v{r}, v{r+1}, v{r+2} bitop3:0x80
v_max3_u32 v6, v{r+3}, v{r+4}, v{r+5}
v_bitop3_b32 v7, v7, v{r+3}, v{r+4} bitop3:0x80
v_max3_u32 v5, v5, v{r+6}, v{r+7}
v_bitop3_b32 v7, v7, v{r+5}, v{r+6} bitop3:0x80
v_max_u32 v5, v5, v6
v_bitop3_b32 v7, v7, v{r+7}, 1 bitop3:0x80
v_add_u32 v5, 1, v5
v_min_u32 v5, v5, v7
v_cmp_eq_u32 vcc, 0, v5""")
    def p_fin(k):
        r = 64 + 8 * k
        a(f"v_pk_add_f32 v[52:53], v[{r}:{r+1}], v[{r+4}:{r+5}]\nv_pk_add_f32 v[54:55], v[{r+2}:{r+3}], v[{r+6}:{r+7}]")
    spoll("RS", NP, 2, p_issue, p_check, p_fin, opt.get("ppace", 0))
    cnt(14)
    stamp(8)
    tred(52, 48)
    a("global_store_dwordx2 v26, v[48:49], s[40:41] sc1\nglobal_store_dwordx2 v27, v[48:49], s[40:41] sc1")
    stamp(9)
    def i_issue(k): a(f"global_load_dwordx4 v[{96+4*k}:{99+4*k}], v28, s[40:41] sc1")
    def i_check(k):
        xtag("v5", (97 + 4 * k, 99 + 4 * k)); a("v_cmp_ne_u32 vcc, 0, v5")
    def i_spec(k):
        r = 96 + 4 * k
        a(f"v_permlane32_swap_b32 v{r}, v{r+2}\nv_add_f32 v52, v{r}, v{r+2}")
    spoll("I", NI, 1, i_issue, i_check, i_spec, opt.get("ipace", 0))
    cnt(11)
    stamp(10)
    a(f"""v_add_f32_dpp v52, v52, v52 row_ror:8 {DPP}
v_mov_b32 v54, v52
v_permlane16_swap_b32 v54, v52
v_add_f32 v52, v52, v54""")
    rbf("v52", "v52")
    a(f"""v_add_f32 v52, v52, v31
v_mov_b32 v54, v52
v_permlane32_swap_b32 v54, v52
v_cvt_pk_bf16_f32 v48, v54, v52""")
    lstore(44, ["global_store_dwordx2 v29, v[48:49], s[40:41]"])
    HH = opt.get("hh", True)
    if HH: a("s_mov_b64 exec, -1\ns_branch L_HH")
    else:
        bar("barR")
        endp()

    a("L_S:")
    XE = opt.get("xe", True)
    def xld():
        a(f"""; ---- MLP waves: lane L = s*64 + l owns f = 7L .. 7L+6 ----
s_lshl_b32 s12, s5, 6
v_add_u32 v3, s12, v0
v_mul_u32_u24 v4, 14, v3
v_and_b32 v5, 1, v0
v_lshlrev_b32 v5, 1, v5
v_sub_u32 v4, v4, v5
global_load_dwordx4 v[112:115], v4, s[28:29]
global_load_dwordx4 v[116:119], v4, s[30:31]
global_load_dwordx4 v[120:123], v4, s[32:33]
v_mov_b32 v5, 0
global_load_ushort v125, v5, s[34:35]
global_load_ushort v126, v5, s[36:37]
s_mov_b32 s43, 0xffff0000
v_lshlrev_b32 v5, 4, v5
v_mov_b32 v88, {f2u(GK0)}
v_mov_b32 v89, {f2u(GK1)}
v_mov_b32 v90, 1.0
s_mul_i32 s11, s3, 28
s_add_u32 s11, s11, s4
s_lshl_b32 s11, s11, 1           ; d0 = g*56 + mbr*2""")
    if XE:
        a("s_cmp_ge_u32 s4, 28\ns_cbranch_scc1 L_S_1\ns_cmp_ge_u32 s5, 4\ns_cbranch_scc1 L_S_1")
        xld()
        a("L_S_1:")
    masks(8, "v4", "v5")
    a(f"""v_bfe_u32 v3, v0, 3, 1
v_lshl_add_u32 v6, v3, 9, v6
v_lshrrev_b32 v4, 4, v0
s_lshl_b32 s12, s5, 2
v_add_u32 v7, s12, v4
v_lshlrev_b32 v7, 4, v7
v_lshl_add_u32 v7, v3, 9, v7
v_lshlrev_b32 v4, 3, v4
v_and_b32 v5, 7, v0
v_add_u32 v4, v4, v5
v_lshlrev_b32 v4, 4, v4
v_lshl_add_u32 v3, v3, 9, v4
s_mov_b32 s42, {C_SC}
s_mov_b32 s44, 0x01010101
s_mov_b32 s45, 0x01010101
v_mov_b32 v5, 0
s_waitcnt lgkmcnt(0)""")
    bar("bar1"); bar("bar2")
    for i in range(KH, 8): kld(i)
    VX = opt.get("vx", 3)
    if VX:
        a("s_cmp_eq_u32 s5, 7\ns_cbranch_scc1 L_S_k")
        for i in range(VX): vld(i)
        a("L_S_k:")
    bar("barK"); bar("barK2")
    a("s_cmp_eq_u32 s5, 7\ns_cbranch_scc1 L_S_q")
    for i in range(VX, VP): vld(i)
    a("L_S_q:")
    stamp(1)
    bar("barQ")
    stamp(2)
    a(f"""ds_read_b128 v[12:15], v6 offset:{L_Q}
ds_read_b128 v[16:19], v6 offset:{L_Q+256}
ds_read_b96 v[20:22], v5 offset:{L_FL}
s_cmp_lg_u32 s5, 7
s_cbranch_scc1 L_S_qk""")
    for i in range(FQ): vld(i)
    a(f"""s_waitcnt vmcnt({FQ})
L_S_qk:
s_waitcnt vmcnt({VP}) lgkmcnt(0)""")
    stamp(3)
    for hf in range(2):
        for t in range(4):
            c = "0" if hf == 0 else f"v[{96+4*t}:{99+4*t}]"
            a(f"v_mfma_f32_16x16x32_bf16 v[{96+4*t}:{99+4*t}], v[{32+8*t+4*hf}:{35+8*t+4*hf}], v[{12+4*hf}:{15+4*hf}], {c}")
    a("v_readfirstlane_b32 s9, v20\nv_readfirstlane_b32 s14, v21\nv_readfirstlane_b32 s13, v22")
    for t in range(4):
        for r in range(4):
            q = f"quad_perm:[{r},{r},{r},{r}]"
            if r == 0: a(f"v_mov_b32_dpp v{28+t}, v{96+4*t} {q} {DPP}")
            else: a(f"v_add_f32_dpp v{28+t}, v{96+4*t+r}, v{28+t} {q} {DPP}")
    for t in range(4): a(f"v_cvt_pk_bf16_f32 v{28+t}, v{28+t}, v{28+t}")
    for t in range(4): a(f"v_lshlrev_b32 v{28+t}, 16, v{28+t}")
    a(f"""s_mov_b64 exec, s[44:45]
ds_write_b128 v7, v[28:31] offset:{L_SC}
s_mov_b64 exec, -1
s_waitcnt lgkmcnt(0)""")
    bar("barM")
    a(f"""ds_read_b128 v[12:15], v3 offset:{L_SC}
s_waitcnt lgkmcnt(0)
v_max3_f32 v4, v12, v13, v14
v_max_f32 v4, v4, v15""")
    for m in ("quad_perm:[1,0,3,2]", "quad_perm:[2,3,0,1]", "row_half_mirror"):
        a(f"v_max_f32_dpp v4, v4, v4 {m} {DPP}")
    red_x16("v_max_f32", "v4", "v5"); red_x32("v_max_f32", "v4", "v5")
    for t in range(4): a(f"v_sub_f32 v{28+t}, v{28+t}, v4")
    for t in range(4): a(f"v_mul_f32 v{28+t}, s42, v{28+t}")
    for t in range(4): a(f"v_exp_f32 v{28+t}, v{28+t}")
    for t in range(4): a(f"v_cvt_pk_bf16_f32 v{28+t}, v{28+t}, v{28+t}")
    for t in range(4):
        for d in range(4): a(f"v_and_b32 v{96+4*t+d}, v{28+t}, v{8+d}")
    a("v_lshlrev_b32 v1, 4, v0")
    stamp(4)
    bar("barW")
    if DS: bar("barW2")
    a("s_cmp_eq_u32 s5, 7\ns_cbranch_scc1 L_F")
    for i in range(VP, 8): vld(i)
    def pv(first_zero):
        for i in range(8):
            t, hf = i // 2, i % 2
            a(f"s_waitcnt vmcnt({7-i})")
            if i == 7: stamp(6)
            c = "0" if (t == 0 and first_zero) else f"v[{20+4*hf}:{23+4*hf}]"
            a(f"v_mfma_f32_16x16x32_bf16 v[{20+4*hf}:{23+4*hf}], v[{96+4*t}:{99+4*t}], v[{64+4*i}:{67+4*i}], {c}")
    pv(True)
    a(f"""s_lshl_b32 s12, s5, 11
v_add_u32 v2, s12, v1
ds_write_b128 v2, v[20:23] offset:{L_OP}
ds_write_b128 v2, v[24:27] offset:{L_OP+1024}
s_waitcnt lgkmcnt(0)""")
    stamp(5)
    bar("barO")
    a(f"""s_cmp_ge_u32 s4, 28
s_cbranch_scc1 L_fin
s_cmp_ge_u32 s5, 4
s_cbranch_scc1 L_fin""")
    bar("barS")
    if not XE: xld()
    a(f"""s_lshl_b32 s12, s3, 11
s_add_u32 s12, s12, {WS_H}
v_add_u32 v3, s12, v1
s_lshl_b32 s15, s11, 2
s_add_u32 s12, s12, s15
v_mov_b32 v4, s12
s_mov_b32 s48, {f2u(1.0/448)}
s_mov_b32 s49, {f2u(1e-5)}
s_mov_b32 s50, -1
s_mov_b32 s51, 0xffff""")
    HB = [112, 8, 54] if opt.get("hh", True) else [96, 8, 106]
    def h_issue(k):
        r = HB[k]
        a(f"""global_load_dwordx2 v[{r+8}:{r+9}], v4, s[40:41] sc1
global_load_dwordx4 v[{r}:{r+3}], v3, s[40:41] sc1
s_mov_b64 exec, s[50:51]
global_load_dwordx4 v[{r+4}:{r+7}], v3, s[40:41] offset:1024 sc1
s_mov_b64 exec, -1""")
    def h_check(k):
        r = HB[k]
        xtag("v5", (r + 1, r + 3, r + 5, r + 7, r + 9)); a("v_cmp_ne_u32 vcc, 0, v5")
    def h_fin(k):
        r = HB[k]
        a(f"""v_and_b32 v95, s43, v{r+8}
v_lshlrev_b32 v94, 16, v{r+8}
v_and_b32 v33, s43, v{r}
v_lshlrev_b32 v32, 16, v{r}
v_and_b32 v35, s43, v{r+2}
v_lshlrev_b32 v34, 16, v{r+2}
v_and_b32 v41, s43, v{r+4}
v_lshlrev_b32 v40, 16, v{r+4}
v_and_b32 v47, s43, v{r+6}
v_lshlrev_b32 v46, 16, v{r+6}""")
    for k in range(NH): a(f"v_mov_b32 v{HB[k]+5}, s14\nv_mov_b32 v{HB[k]+7}, s14")
    if opt.get("warm", True): h_issue(0)
    a("s_waitcnt vmcnt(0)")
    for k in range(3):
        r = 112 + 4 * k; o = 64 + 8 * k
        for j in range(3): a(f"v_alignbit_b32 v{r+j}, v{r+j+1}, v{r+j}, v5")
        a(f"v_lshrrev_b32 v{r+3}, v5, v{r+3}")
        for j in range(3): a(f"v_lshlrev_b32 v{o+2*j}, 16, v{r+j}\nv_and_b32 v{o+2*j+1}, s43, v{r+j}")
        a(f"v_lshlrev_b32 v{o+6}, 16, v{r+3}")
    if not HH:
        for k in range(NH): a(f"v_mov_b32 v{HB[k]+5}, s14\nv_mov_b32 v{HB[k]+7}, s14")
    a(f"""v_lshlrev_b32 v125, 16, v125
v_lshrrev_b32 v6, 5, v0
v_lshlrev_b32 v6, 4, v6
s_lshl_b32 s12, s5, 2
v_add_u32 v6, s12, v6
s_lshl_b32 s12, s11, 1
v_lshl_add_u32 v7, v0, 1, s12
s_mov_b32 s46, 0x10000
s_mov_b32 s47, 0x10000
s_cmp_eq_u32 s5, 0
s_cselect_b64 s[44:45], 3, 0""")
    bar("barR")
    stamp(7)
    spoll("A", NH, 3, h_issue, h_check, h_fin, opt.get("hpace", 0))
    cnt(14)
    stamp(8)
    a(f"""v_pk_add_f32 v[32:33], v[32:33], v[94:95] {NEG1}
v_pk_add_f32 v[34:35], v[34:35], v[94:95] {NEG1}
v_pk_add_f32 v[40:41], v[40:41], v[94:95] {NEG1}
v_pk_add_f32 v[46:47], v[46:47], v[94:95] {NEG1}
v_pk_mul_f32 v[42:43], v[32:33], v[32:33]
v_pk_add_f32 v[44:45], v[32:33], v[34:35]
v_pk_fma_f32 v[42:43], v[34:35], v[34:35], v[42:43]
s_mov_b64 exec, s[50:51]
v_pk_add_f32 v[44:45], v[44:45], v[40:41]
v_pk_fma_f32 v[42:43], v[40:41], v[40:41], v[42:43]
v_pk_add_f32 v[44:45], v[44:45], v[46:47]
v_pk_fma_f32 v[42:43], v[46:47], v[46:47], v[42:43]
s_mov_b64 exec, -1
v_add_f32 v44, v44, v45
v_add_f32 v42, v42, v43
v_sub_f32 v47, v95, v94""")
    for m in ("quad_perm:[1,0,3,2]", "quad_perm:[2,3,0,1]", "row_half_mirror", "row_mirror"):
        a(f"v_add_f32_dpp v44, v44, v44 {m} {DPP}\nv_add_f32_dpp v42, v42, v42 {m} {DPP}")
    for sw in ("v_permlane16_swap_b32", "v_permlane32_swap_b32"):
        a(f"v_mov_b32 v45, v44\nv_mov_b32 v43, v42\n{sw} v45, v44\n{sw} v43, v42\nv_add_f32 v44, v44, v45\nv_add_f32 v42, v42, v43")
    a("""v_mul_f32 v44, s48, v44          ; mean - c
v_mul_f32 v42, s48, v42
v_fma_f32 v42, -v44, v44, v42    ; var
v_max_f32 v42, 0, v42
v_add_f32 v43, s49, v42
v_fma_f32 v42, v43, s49, v42
v_rsq_f32 v42, v42
v_sub_f32 v47, v47, v44
v_sub_f32 v46, 0, v44
v_pk_mul_f32 v[92:93], v[46:47], v[42:43] op_sel_hi:[1,0]""")
    if HH:
        a(f"s_mov_b64 exec, 1\nds_write_b128 v1, v[92:95] offset:{L_HS}\ns_waitcnt lgkmcnt(0)")
        bar("barR")
        endp()
        a("L_MLP:")
    stamp(10)
    def bc(base, i):
        r = base + (i & ~1)
        return f"v[{r}:{r+1}]", i & 1
    for i in range(7):
        w, s1 = bc(64, i); b, s2 = bc(72, i)
        a(f"v_pk_fma_f32 v[{32+2*i}:{33+2*i}], v[92:93], {w}, {b} op_sel:[0,{s1},{s2}] op_sel_hi:[1,{s1},{s2}]")
    for i in range(7): a(f"v_pk_mul_f32 v[{48+2*i}:{49+2*i}], v[{32+2*i}:{33+2*i}], v[{32+2*i}:{33+2*i}]")
    for i in range(7): a(f"v_pk_fma_f32 v[{48+2*i}:{49+2*i}], v[{48+2*i}:{49+2*i}], v[88:89], v[88:89] op_sel:[0,1,0] op_sel_hi:[1,1,0]")
    for i in range(7): a(f"v_pk_mul_f32 v[{48+2*i}:{49+2*i}], v[{48+2*i}:{49+2*i}], v[{32+2*i}:{33+2*i}]")
    for i in range(14): a(f"v_exp_f32 v{48+i}, v{48+i}")
    for i in range(7):
        w, s1 = bc(80, i)
        a(f"v_pk_mul_f32 v[{32+2*i}:{33+2*i}], v[{32+2*i}:{33+2*i}], {w} op_sel:[0,{s1}] op_sel_hi:[1,{s1}]")
    for i in range(7): a(f"v_pk_add_f32 v[{48+2*i}:{49+2*i}], v[{48+2*i}:{49+2*i}], v[90:91] op_sel_hi:[1,0]")
    for i in range(14): a(f"v_rcp_f32 v{48+i}, v{48+i}")
    a("v_pk_mul_f32 v[20:21], v[32:33], v[48:49]")
    for i in range(1, 7): a(f"v_pk_fma_f32 v[20:21], v[{32+2*i}:{33+2*i}], v[{48+2*i}:{49+2*i}], v[20:21]")
    stamp(11)
    a("v_permlane32_swap_b32 v20, v21\nv_add_f32 v20, v20, v21")
    red_row("v_add_f32", "v20")
    a(f"""v_add_f32_dpp v20, v20, v20 row_bcast:15 row_mask:0xa bank_mask:0xf
s_mov_b64 exec, s[46:47]
ds_write_b32 v6, v20 offset:{L_YS}
s_mov_b64 exec, 2
v_mov_b32 v94, v95
s_mov_b64 exec, 3
s_waitcnt lgkmcnt(0)""")
    bar("barY")
    a(f"""ds_read_b128 v[20:23], v1 offset:{L_YS}
s_waitcnt lgkmcnt(0)
v_pk_add_f32 v[20:21], v[20:21], v[22:23]
v_add_f32 v20, v20, v21""")
    rbf("v20", "v20")
    a("v_add_f32 v20, v20, v125"); rbf("v20", "v20")
    a("v_add_f32 v20, v20, v94\ns_mov_b64 exec, s[44:45]\nv_cvt_pk_bf16_f32 v20, v20, v20\nglobal_store_short v7, v20, s[36:37]")
    stamp(12)
    a(f"""s_or_b32 s12, s2, s5
s_cbranch_scc1 L_fin
s_add_u32 s13, s13, 16
v_mov_b32 v4, s13
v_mov_b32 v5, 0
s_mov_b64 exec, 1
global_store_dword v5, v4, s[40:41] offset:{WS_E}
L_fin:""")
    endp()
    quads = [32,36,40,44,48,52,56, 60,112,116,120,124,12,16]
    a("L_F:")
    for i in range(FQ, 8): vld(i)
    a(f"""; piece (hf, l) goes to member hf*16 + (l>>2): O + (g*32 + member)*2048 + mbr*64 + (l&3)*16
s_lshl_b32 s12, s3, 16
s_lshl_b32 s11, s4, 6
s_add_u32 s12, s12, s11
s_add_u32 s12, s12, {WS_O}
v_lshrrev_b32 v2, 2, v0
v_lshlrev_b32 v2, 11, v2
v_and_b32 v3, 3, v0
v_lshl_add_u32 v2, v3, 4, v2
v_add_u32 v2, s12, v2
v_add_u32 v3, 0x8000, v2""")
    lmasks(46, "-1")
    bar("barO")
    for hf in range(2):
        for w in range(7):
            q = quads[hf*7 + w]
            a(f"ds_read_b128 v[{q}:{q+3}], v1 offset:{L_OP + w*2048 + hf*1024}")
    for hf in range(2):
        a(f"s_waitcnt lgkmcnt({7 - 7*hf})")
        Q = quads[hf*7:hf*7+7]
        for h in (0, 2):
            a(f"v_pk_add_f32 v[{Q[0]+h}:{Q[0]+h+1}], v[{Q[0]+h}:{Q[0]+h+1}], v[{Q[1]+h}:{Q[1]+h+1}]")
            a(f"v_pk_add_f32 v[{Q[2]+h}:{Q[2]+h+1}], v[{Q[2]+h}:{Q[2]+h+1}], v[{Q[3]+h}:{Q[3]+h+1}]")
            a(f"v_pk_add_f32 v[{Q[4]+h}:{Q[4]+h+1}], v[{Q[4]+h}:{Q[4]+h+1}], v[{Q[5]+h}:{Q[5]+h+1}]")
            a(f"v_pk_add_f32 v[{Q[0]+h}:{Q[0]+h+1}], v[{Q[0]+h}:{Q[0]+h+1}], v[{Q[6]+h}:{Q[6]+h+1}]")
            a(f"v_pk_add_f32 v[{Q[2]+h}:{Q[2]+h+1}], v[{Q[2]+h}:{Q[2]+h+1}], v[{Q[4]+h}:{Q[4]+h+1}]")
            a(f"v_pk_add_f32 v[{20+4*hf+h}:{21+4*hf+h}], v[{Q[0]+h}:{Q[0]+h+1}], v[{Q[2]+h}:{Q[2]+h+1}]")
    stamp(5)
    pv(False)
    for r in range(20, 24): a(f"v_and_b32 v{r}, -2, v{r}")
    a("s_mov_b64 exec, s[46:47]\nglobal_store_dwordx4 v2, v[20:23], s[40:41]\ns_mov_b64 exec, -1")
    for r in range(24, 28): a(f"v_and_b32 v{r}, -2, v{r}")
    a("""s_mov_b64 exec, s[46:47]
global_store_dwordx4 v3, v[24:27], s[40:41]
s_mov_b64 exec, s[48:49]
global_store_dwordx4 v2, v[20:23], s[40:41] sc1
global_store_dwordx4 v3, v[24:27], s[40:41] sc1""")
    stamp(7)
    endp()
    if JAN:
        a("L_jan:\ns_cmp_lg_u32 s4, 31\ns_cbranch_scc1 L_fin")
        if JAN == 2:
            spin_top("L_J_poll", "L_J_got")
            p_issue(0); a("s_waitcnt vmcnt(0)"); p_check(0); a("s_cbranch_vccnz L_J_poll\nL_J_got:")
        a("buffer_wbl2 sc1\ns_waitcnt vmcnt(0)\ns_branch L_fin")
    if opt.get("dirt"):
        pass
    a("""L_T_poll:
s_sub_u32 s10, s10, 1
s_cbranch_scc1 L_T_got
global_load_dword v44, v15, s[40:41] sc1
s_waitcnt vmcnt(0)
s_branch L_T_chk""")
    a("L_H_far:\ns_waitcnt vmcnt(0)")
    gpub()
    spin_top("L_H_gpoll", "L_H_got")
    a(f"v_xor_b32 v12, {WS_G ^ WS_A}, v12")
    pset()
    a("s_waitcnt vmcnt(0)")
    pchk()
    a("s_cbranch_vccnz L_H_gpoll\ns_branch L_H_got")
    a("L_H_span:\ns_waitcnt vmcnt(0) lgkmcnt(0)")
    gpub()
    a(f"""v_mov_b32 v4, -1
v_mov_b32 v5, -1
v_mov_b32 v6, -1
v_mov_b32 v7, -1
s_lshl_b32 s11, s6, 11
s_add_u32 s11, s11, {WS_O}
v_add_u32 v2, s11, v1
global_store_dwordx4 v2, v[4:7], s[40:41] sc1
global_store_dwordx4 v2, v[4:7], s[40:41] offset:1024 sc1
s_waitcnt vmcnt(0)
s_mov_b64 exec, 0xff
v_add_u32 v2, {WS_B}, v1
global_store_dwordx4 v2, v[8:11], s[54:55] sc1
s_mov_b64 exec, -1
s_lshl_b32 s11, s3, 12
s_add_u32 s11, s11, {WS_B + 4}
v_and_b32 v2, 31, v0
v_lshlrev_b32 v2, 7, v2
v_add_u32 v2, s11, v2""")
    spin_top("L_H_bpoll", "L_H_go")
    a(f"""global_load_dword v4, v2, s[40:41] sc1
s_waitcnt vmcnt(0)
v_xor_b32 v4, s14, v4
v_cmp_lt_u32 vcc, 15, v4
s_cbranch_vccnz L_H_bpoll
s_branch L_H_go""")
    if diag:
        a(f"""L_dump:
s_memtime s[94:95]
s_memrealtime s[96:97]
s_mov_b64 exec, -1
v_mov_b32 v0, 0
s_waitcnt lgkmcnt(0)""")
        regs = [60, 58] + [64 + 2*i for i in range(16)] + [96, 62]
        for i, r in enumerate(regs): a(f"v_mov_b32 v{4+i}, s{r}")
        a(f"""s_lshl_b32 s11, s99, 7
v_mov_b32 v1, s11
s_mov_b64 exec, 1""")
        for i in range(0, 20, 4): a(f"ds_write_b128 v1, v[{4+i}:{7+i}] offset:{L_TS + i*4}")
        a(f"""v_mov_b32 v2, 1
s_waitcnt lgkmcnt(0)
ds_add_rtn_u32 v3, v0, v2 offset:{L_TS + 2048}
s_waitcnt lgkmcnt(0)
v_readfirstlane_b32 s11, v3
s_cmp_lg_u32 s11, 15
s_cbranch_scc1 L_exit
s_mov_b64 exec, -1
v_mbcnt_lo_u32_b32 v1, -1, 0
v_mbcnt_hi_u32_b32 v1, -1, v1
v_lshlrev_b32 v1, 4, v1
ds_read_b128 v[4:7], v1 offset:{L_TS}
ds_read_b128 v[8:11], v1 offset:{L_TS + 1024}
s_lshl_b32 s11, s2, 11
s_add_u32 s11, s11, {TS_OFF}
s_add_u32 s40, s40, s11
s_addc_u32 s41, s41, 0
s_waitcnt lgkmcnt(0)
global_store_dwordx4 v1, v[4:7], s[40:41]
global_store_dwordx4 v1, v[8:11], s[40:41] offset:1024
s_endpgm""")
    a("L_exit:\ns_endpgm")
    a.fix()
    body = a.text()
    if diag:
        body = body.replace("    s_lshr_b32 s4, s2, 3             ; member\n", "    s_lshr_b32 s4, s2, 3\n    s_mov_b32 s99, s5\n", 1)
    refp = "cdna_kernels/" + NAME + ".s.ref"
    hdr = open(refp).read().split("; @launch")[0] if os.path.exists(refp) else ""
    return hdr + f"""; @launch grid=(256,1,1) block=(1024,1,1) lds={LDS_BYTES + (4096 if diag else 0)}
.amdgcn_target "amdgcn-amd-amdhsa--gfx950"
.text
.globl {KNAME}
.p2align 8
.type {KNAME},@function
{KNAME}:
""" + body + f""".section .rodata,"a"
.p2align 6
.amdhsa_kernel {KNAME}
  .amdhsa_next_free_vgpr 128
  .amdhsa_next_free_sgpr 102
  .amdhsa_accum_offset 128
  .amdhsa_group_segment_fixed_size 0
  .amdhsa_kernarg_size 104
  .amdhsa_user_sgpr_count 2
  .amdhsa_user_sgpr_kernarg_segment_ptr 1
  .amdhsa_system_sgpr_workgroup_id_x 1
  .amdhsa_float_denorm_mode_32 3
.end_amdhsa_kernel
"""

if __name__ == "__main__":
    open("k8.s", "w").write(gen())
    open("k8d.s", "w").write(gen(diag=True))
```
